```python
import torch

def _softmax(x, axis=-1):
    return torch.softmax(x, dim=axis)
def _gelu(x):
    return torch.nn.functional.gelu(x, approximate="tanh")
def _silu(x):
    return torch.nn.functional.silu(x)
def _sigmoid(x):
    return torch.sigmoid(x)
def _layernorm(x, axis=-1, eps=1e-5):
    m = x.mean(dim=axis, keepdim=True)
    v = x.var(dim=axis, keepdim=True, unbiased=False)
    return (x - m) / torch.sqrt(v + eps)
def _scatter_add(tgt, idx, src, axis=0):
    return tgt.clone().index_add_(axis, idx, src)
def _segment_sum(src, seg, n):
    out = torch.zeros((n,) + src.shape[1:], dtype=src.dtype)
    return out.index_add_(0, seg, src)
def _pad(x, pw):
    flat = tuple(v for pair in reversed(pw) for v in pair)
    return torch.nn.functional.pad(x, flat)

kernel_name = 'recurrent_scan__sliding_block_cached__dense_activation_silu__prompt'

def setup_inputs():

    _w = (lambda a: (lambda t: t.to(torch.bfloat16) if t.is_floating_point() else t)(torch.as_tensor(a)))
    def _A_setup():
        B, Sq, D = 1, 2048, 576
        Hq, Hkv, Sk, Dh = 32, 16, 2048, 128
        assert Hq % Hkv == 0, (Hq, Hkv)
        return {
            "x": _w((lambda *s: torch.randn(*s, dtype=torch.bfloat16) * 0.05)(B, Sq, D)),
            "k_cache": _w((lambda *s: torch.randn(*s, dtype=torch.bfloat16) * 1.6)(B, Hkv, Sk, Dh)),
            "v_cache": _w((lambda *s: torch.randn(*s, dtype=torch.bfloat16) * 0.8)(B, Hkv, Sk, Dh)),
            "wq": _w((lambda *s: torch.randn(*s, dtype=torch.bfloat16) * 1.6)(D, Hq * Dh) * (D ** -0.5)),
            "wo": _w((lambda *s: torch.randn(*s, dtype=torch.bfloat16) * 0.8)(Hq * Dh, D) * ((Hq * Dh) ** -0.5)),
        }
    _A_in = _A_setup()

    def _B_setup():
        B, S, D, F = 1, 2048, 576, 4608
        return {
            "x": _w((lambda *s: torch.randn(*s, dtype=torch.bfloat16) * 0.05)(B, S, D)),
            "w1": _w((lambda *s: torch.randn(*s, dtype=torch.bfloat16) * 1.6)(D, F) * (D ** -0.5)),
            "w2": _w((lambda *s: torch.randn(*s, dtype=torch.bfloat16) * 0.2)(F, D) * (F ** -0.5)),
        }
    _B_in = _B_setup()

    return {
        "A_x": _A_in["x"],
        "A_k_cache": _A_in["k_cache"],
        "A_v_cache": _A_in["v_cache"],
        "A_wq": _A_in["wq"],
        "A_wo": _A_in["wo"],
        "B_x": _B_in["x"],
        "B_w1": _B_in["w1"],
        "B_w2": _B_in["w2"],
    }

def reference(A_x, A_k_cache, A_v_cache, A_wq, A_wo, B_x, B_w1, B_w2):
    def _A_ref(x, k_cache, v_cache, wq, wo):
        B, Sq, D = x.shape
        Hq, Dh = 32, 128
        Hkv, Sk = k_cache.shape[1], k_cache.shape[2]
        W = min(4096, max(256, Sk // 4))
        rep = Hq // Hkv
        q = (lambda x, *d: x.permute(*d))((x @ wq).reshape(B, Sq, Hq, Dh), 0, 2, 1, 3)
        k = (lambda x, n, axis: torch.repeat_interleave(x, n, dim=axis))(k_cache[:, :, Sk - W:, :], rep, axis=1)
        v = (lambda x, n, axis: torch.repeat_interleave(x, n, dim=axis))(v_cache[:, :, Sk - W:, :], rep, axis=1)
        scores = torch.einsum("bhqd,bhkd->bhqk", q, k) * (Dh ** -0.5)
        p = _softmax(scores, axis=-1)
        o = torch.einsum("bhqk,bhkd->bhqd", p, v)
        return (lambda x, *d: x.permute(*d))(o, 0, 2, 1, 3).reshape(B, Sq, Hq * Dh) @ wo

    def _B_ref(x, w1, w2):
        h = torch.einsum("bsd,df->bsf", x, w1)
        h = _silu(h)
        out = torch.einsum("bsf,fd->bsd", h, w2)
        return out

    x = A_x
    xn = _layernorm(x, axis=-1)
    s = _A_ref(xn, A_k_cache, A_v_cache, A_wq, A_wo)
    g = _silu(_B_ref(xn, B_w1, B_w2))
    return x + s * g
```

```python
import re
NAME = "recurrent_scan__sliding_block_cached__dense_activation_silu__prompt"

def vr(base, n=1, kind="v"):
    return f"{kind}[{base}:{base+n-1}]" if n > 1 else f"{kind}{base}"

class R:
    def __init__(s, kind, base, n=1): s.k, s.b, s.n = kind, base, n
    def __str__(s): return vr(s.b, s.n, s.k)
    def sub(s, off, n=1): assert off + n <= s.n; return R(s.k, s.b + off, n)

_REG = re.compile(r"^(-|\|)?(?:abs\()?([vas])(?:\[(\d+):(\d+)\]|(\d+))\)?\|?$")
def regs_of(tok):
    tok = tok.strip()
    if tok in ("vcc", "exec", "m0", "scc"): return {tok}
    if tok in ("vcc_lo", "vcc_hi"): return {"vcc"}
    if tok in ("exec_lo", "exec_hi"): return {"exec"}
    m = _REG.match(tok)
    if not m: return set()
    k = m.group(2)
    if m.group(3) is not None: return {(k, i) for i in range(int(m.group(3)), int(m.group(4)) + 1)}
    return {(k, int(m.group(5)))}

TRANS = ("v_exp_f32", "v_rcp_f32", "v_rsq_f32", "v_sqrt_f32", "v_log_f32")
def parse(text):
    t = text.split(";")[0].strip()
    op, _, rest = t.partition(" ")
    ops = [o.strip() for o in re.split(r",(?![^\[]*\])", rest)] if rest else []
    mods = []
    if ops:
        last = ops[-1].split()
        if last: ops[-1] = last[0]; mods = last[1:]
    RS = lambda l: set().union(*[regs_of(o) for o in l]) if l else set()
    if op.startswith("v_mfma"): return op, "mfma", regs_of(ops[0]), RS(ops[1:]) | {"exec"}
    if op.startswith("ds_read") or op.startswith("ds_bpermute") or op.startswith("ds_swizzle"): return op, "lds_rd", regs_of(ops[0]), RS(ops[1:])
    if op.startswith("ds_write"): return op, "lds_wr", set(), RS(ops)
    if op.startswith("buffer_load"):
        if "lds" in mods: return op, "dma", set(), RS(ops) | {"m0"}
        return op, "vm_ld", regs_of(ops[0]), RS(ops[1:])
    if op.startswith("buffer_store"): return op, "vm_st", set(), RS(ops)
    if op.startswith("buffer_atomic"):
        return op, ("vm_ld" if "sc0" in mods else "vm_st"), (regs_of(ops[0]) if "sc0" in mods else set()), RS(ops)
    if op.startswith("buffer_"): return op, "other", set(), set()
    if op in ("s_waitcnt", "s_barrier", "s_nop", "s_endpgm", "s_setprio", "s_sleep") or op.startswith("s_cbranch") or op == "s_branch":
        return op, op if op in ("s_waitcnt", "s_barrier", "s_nop") else "other", set(), set()
    if op.startswith("s_load") or op in ("s_memtime", "s_memrealtime"): return op, "smem", regs_of(ops[0]), RS(ops[1:])
    if op.startswith("s_cmp"): return op, "salu", {"scc"}, RS(ops)
    if op.startswith("s_"):
        w = regs_of(ops[0])
        if "saveexec" in op: w |= {"exec"}
        return op, "salu", w | {"scc"}, RS(ops[1:])
    if op.startswith("v_"):
        base = op.replace("_e32", "").replace("_e64", "")
        kind = "trans" if base in TRANS else "valu"
        if base.startswith("v_permlane"): return op, "perm", RS(ops[:2]), RS(ops[:2])
        if base.startswith("v_cmp"): return op, kind, regs_of(ops[0]), RS(ops[1:])
        w = regs_of(ops[0]); r = RS(ops[1:])
        if "_co_" in base: w |= regs_of(ops[1]); r = RS(ops[2:])
        if base.startswith("v_fmac") or base.startswith("v_dot2c"): r |= w
        if base in ("v_readfirstlane_b32", "v_readlane_b32"): return op, "rdlane", w, r
        if base == "v_writelane_b32": return op, "valu", w, r
        if any(m.startswith(("row_", "quad_perm", "wave_")) for m in mods): kind = "dpp"
        return op, kind, w, r
    raise ValueError("cannot parse: " + text)

class Prog:
    def __init__(self):
        self.L = []; self.lg = []; self.vm = []
    def e(self, s): self.L.append("  " + s)
    def label(self, s): self.L.append(s + ":")
    def c(self, s): self.L.append("  ; " + s)
    def lds(self, s, tok=None): self.e(s); self.lg.append(tok)
    def vmem(self, s, tok=None): self.e(s); self.vm.append(tok)
    def _need(self, q, toks):
        idx = [i for i, t in enumerate(q) if t in toks]
        return None if not idx else len(q) - 1 - max(idx)
    def needs_wait(self, lg=(), vm=()):
        return self._need(self.lg, lg) is not None or self._need(self.vm, vm) is not None
    def wait(self, lg=(), vm=()):
        parts = []
        n = self._need(self.vm, vm)
        if n is not None:
            n = min(n, 63); parts.append(f"vmcnt({n})"); self.vm = self.vm[len(self.vm) - n:] if n else []
        n = self._need(self.lg, lg)
        if n is not None:
            n = min(n, 15); parts.append(f"lgkmcnt({n})"); self.lg = self.lg[len(self.lg) - n:] if n else []
        if parts: self.e("s_waitcnt " + " ".join(parts))
        return bool(parts)
    def waitall(self, lg=True, vm=True):
        self.e("s_waitcnt " + " ".join((["vmcnt(0)"] if vm else []) + (["lgkmcnt(0)"] if lg else [])))
        if vm: self.vm = []
        if lg: self.lg = []
    def put(self, it):
        if callable(it): it(self)
        elif isinstance(it, str): self.e(it)
        elif it[0] == "L": self.lds(it[1], it[2])
        elif it[0] == "V": self.vmem(it[1], it[2])
        elif it[0] == "W": self.wait(lg=it[1], vm=it[2])
        elif it[0] == "B": self.wait(vm=it[1]); self.e("s_barrier")
        else: raise ValueError(it)
    def text(self): return "\n".join(self.L) + "\n"

def cost_of(it):
    if callable(it): return getattr(it, 'cost', 1)
    if isinstance(it, str):
        op = it.split()[0]
        return 2 if op.replace("_e32", "").replace("_e64", "") in TRANS else 1
    if it[0] == "B": return 2
    if it[0] == "V": return 1
    return 1

class Q:
    def __init__(s, name=""): s.items = []; s.name = name; s.pos = 0
    def add(s, item, lo=-1, hi=10**9): s.items.append((lo, hi, item))

def schedule(p, mf, queues, budget=2, stats=None):
    n = len(mf)
    for q in queues:
        hi = 10**9; out = []
        for lo, h, it in reversed(q.items):
            hi = min(hi, h); out.append((lo, hi, it))
        q.items = out[::-1]
    over = 0
    def fill(g, bud):
        used = 0
        while True:
            cands = [q for q in queues if q.pos < len(q.items) and q.items[q.pos][0] <= g]
            if not cands: break
            cands.sort(key=lambda q: q.items[q.pos][1])
            pick = None
            for q in cands:
                lo, hi, it = q.items[q.pos]
                if hi <= g or used + cost_of(it) <= bud or (used == 0 and cost_of(it) > budget and bud == budget): pick = q; break
            if pick is None: break
            it = pick.items[pick.pos][2]; pick.pos += 1
            p.put(it); used += cost_of(it)
        return used
    fill(-1, 10**6 if False else 0)
    for i, m in enumerate(mf):
        p.wait(lg=m.get("lg", ()), vm=m.get("vm", ()))
        p.e(m["text"])
        bud = budget
        if i + 1 < n and m.get("resv", True):
            nx = mf[i + 1]
            if nx.get("lg") or nx.get("vm"): bud -= 1
        u = fill(i, bud)
        res = budget - bud
        if u + res > budget: over += u + res - budget
    left = 0
    for q in queues: left += len(q.items) - q.pos
    fill(10**9, 10**6)
    if stats is not None: stats.append((n, over, left))

def check(lines, fix=True):
    out = []
    last = {}
    mfc = {}
    stw = {}
    pos = 0
    lgq = []; vmq = []
    nnop = 0
    for ln in lines:
        t = ln.strip()
        if not t or t.startswith(";") or t.startswith(".") or t.endswith(":"):
            out.append(ln); continue
        op, kind, w, r = parse(t)
        if kind == "s_waitcnt":
            m = re.search(r"vmcnt\((\d+)\)", t)
            if m: n = int(m.group(1)); vmq = vmq[len(vmq) - n:] if n else []
            m = re.search(r"lgkmcnt\((\d+)\)", t)
            if m: n = int(m.group(1)); lgq = lgq[len(lgq) - n:] if n else []
        for q, nm in ((lgq, "lgkm"), (vmq, "vm")):
            for dst in q:
                if dst & (r | w) and not (kind in ("lds_rd", "vm_ld") and not (dst & r)):
                    raise AssertionError(f"use of un-waited {nm} load dest {sorted(dst & (r|w), key=str)[:2]} in: {t}")
        need = 0
        def req(regs, pred, ws):
            nonlocal need
            for x in regs:
                if x in last and pred(last[x][0]): need = max(need, ws - (pos - last[x][1] - 1))
        isv = lambda k: k in ("valu", "trans", "perm", "dpp", "rdlane")
        if kind == "mfma":
            ops = [o.strip() for o in re.split(r",(?![^\[]*\])", t.partition(" ")[2])]
            D, A, B, C = [regs_of(o.split()[0]) for o in ops[:4]]
            req(A | B | C, isv, 2)
            ws = 12 if "32x32" in op else 8
            req(A | B, lambda k: k.startswith("mfma"), ws)
            if C and C != D: req(C, lambda k: k.startswith("mfma"), ws)
            elif C:
                for x in C:
                    if x in last and last[x][0].startswith("mfma") and last[x][2] != (op, min(D)): need = max(need, ws - (pos - last[x][1] - 1))
            if C != D: req(D, lambda k: k.startswith("mfma"), ws)
            req({"exec"}, isv, 4)
        else:
            for x in (r | w):
                if x in last and last[x][0].startswith("mfma"):
                    ws = 12 if last[x][0] == "mfma32" else 8
                    need = max(need, ws - (pos - last[x][1] - 1))
            if isv(kind):
                for x in w:
                    if x in mfc: need = max(need, mfc[x][1] - (pos - mfc[x][0] - 1))
                    if x in stw: need = max(need, 2 - (pos - stw[x] - 1))
                if kind != "trans": req(r, lambda k: k == "trans", 1)
                req({x for x in r if x == "vcc" or (isinstance(x, tuple) and x[0] == "s")}, isv, 2)
            if kind in ("lds_rd", "vm_ld"):
                for x in w:
                    if x in stw: need = max(need, 1 - (pos - stw[x] - 1))
            if kind == "perm" or kind == "dpp": req({x for x in r if isinstance(x, tuple) and x[0] == "v"}, isv, 2)
            if kind == "rdlane": req(r, isv, 1)
            if kind in ("vm_ld", "vm_st", "dma"): req({x for x in r if isinstance(x, tuple) and x[0] == "s"}, isv, 5)
            if kind == "dma": req({"m0"}, lambda k: k == "salu", 1)
            if kind in ("lds_rd", "lds_wr", "vm_ld", "vm_st", "dma"): req(r, lambda k: k == "trans", 1)
        if need > 0:
            if not fix: raise AssertionError(f"hazard: need {need} more wait states before: {t}")
            out.append(f"  s_nop {need - 1}"); pos += need; nnop += 1
        out.append(ln)
        if kind == "s_nop": pos += int(t.split()[1]) + 1
        else: pos += 1
        p_ = pos - 1
        if kind == "mfma":
            k = "mfma32" if "32x32" in op else "mfma16"
            for x in w: last[x] = (k, p_, (op, min(w)))
            for x in C: mfc[x] = (p_, 7 if k == "mfma32" else 3)
        else:
            for x in w: last[x] = (kind, p_, None)
        if kind == "vm_st" and ("x4" in op or "x3" in op):
            ops = [o.strip() for o in re.split(r",(?![^\[]*\])", t.partition(" ")[2])]
            for x in regs_of(ops[0]): stw[x] = p_
        if kind in ("lds_rd", "lds_wr", "smem"): lgq.append(set(w))
        if kind in ("vm_ld", "vm_st", "dma"): vmq.append(set(w))
    return out, nnop

def kd(name, vgpr=512, accum=256, sgpr=102):
    return "\n".join([
        '.section .rodata,"a"', ".p2align 6", f".amdhsa_kernel {name}",
        f"  .amdhsa_next_free_vgpr {vgpr}", f"  .amdhsa_next_free_sgpr {sgpr}", f"  .amdhsa_accum_offset {accum}",
        "  .amdhsa_group_segment_fixed_size 0", "  .amdhsa_kernarg_size 88", "  .amdhsa_user_sgpr_count 2",
        "  .amdhsa_user_sgpr_kernarg_segment_ptr 1", "  .amdhsa_system_sgpr_workgroup_id_x 1", ".end_amdhsa_kernel", ""])

def khead(name):
    return "\n".join([".text", f".globl {name}", ".p2align 8", f".type {name},@function", f"{name}:", ""])
```

```python
from asmlib import *
XNF_OFF = 0; HF_OFF = 0x400000; OF_OFF = 0x1800000; PART_OFF = 0x3000000
PART_SZ = 2359296
LOG2E = 0x3fb8aa3b; LN2 = 0x3f317218

def srd(p, d, lo, hi, nrec, add=None):
    if add is None:
        p.e(f"s_mov_b32 s{d}, s{lo}"); p.e(f"s_mov_b32 s{d+1}, s{hi}")
    else:
        p.e(f"s_add_u32 s{d}, s{lo}, {add}"); p.e(f"s_addc_u32 s{d+1}, s{hi}, 0")
    p.e(f"s_mov_b32 s{d+2}, {nrec}"); p.e(f"s_mov_b32 s{d+3}, 0x20000")

def gen_k0(name):
    p = Prog(); e = p.e
    e("s_cmp_ge_u32 s2, 128"); e("s_cbranch_scc1 L_k0_end")
    e("s_load_dwordx2 s[4:5], s[0:1], 0"); e("s_load_dwordx2 s[6:7], s[0:1], 80")
    e("v_lshrrev_b32 v1, 6, v0"); e("v_and_b32 v2, 63, v0"); e("v_readfirstlane_b32 s3, v1")
    e("v_and_b32 v3, 15, v2"); e("v_lshrrev_b32 v4, 4, v2")
    e("s_waitcnt lgkmcnt(0)")
    srd(p, 8, 4, 5, 2359296); srd(p, 12, 6, 7, 2359296, add=XNF_OFF)
    e("s_lshl_b32 s16, s2, 4"); e("v_add_u32 v5, s16, v3"); e("v_mul_u32_u24 v5, 1152, v5")
    e("v_lshlrev_b32 v6, 4, v4"); e("v_add_u32 v5, v5, v6"); e("s_lshl_b32 s17, s3, 6"); e("v_add_u32 v5, s17, v5")
    for i in range(4): e(f"buffer_load_dwordx4 v[{16+4*i}:{19+4*i}], v5, s[8:11], 0 offen offset:{256*i}")
    for i in range(4): e(f"v_mov_b32 v{32+i}, 0")
    e("s_cmp_ge_u32 s3, 2"); e("s_cbranch_scc1 L_k0_a")
    e("buffer_load_dwordx4 v[32:35], v5, s[8:11], 0 offen offset:1024")
    p.label("L_k0_a")
    e("v_lshlrev_b32 v7, 6, v3"); e("v_lshlrev_b32 v8, 2, v4"); e("v_add_u32 v8, v8, v7"); e("s_lshl_b32 s17, s3, 4"); e("v_add_u32 v8, s17, v8")
    e("s_waitcnt vmcnt(0)")
    for i in range(20):
        e(f"v_lshlrev_b32 v{40+2*i}, 16, v{16+i}"); e(f"v_and_b32 v{41+2*i}, 0xffff0000, v{16+i}")
    e("v_add_f32 v9, v40, v41"); e("v_add_f32 v10, v42, v43")
    for i in range(2, 20): e(f"v_add_f32 v{9+i%2}, v{9+i%2}, v{40+2*i}"); e(f"v_add_f32 v{9+i%2}, v{9+i%2}, v{41+2*i}")
    e("v_add_f32 v9, v9, v10")
    def allred(off):
        e(f"ds_write_b32 v8, v9 offset:{off}"); e("s_waitcnt lgkmcnt(0)"); e("s_barrier")
        for i in range(4): e(f"ds_read_b128 v[{80+4*i}:{83+4*i}], v7 offset:{off+16*i}")
        e("s_waitcnt lgkmcnt(0)")
        for i in range(8): e(f"v_add_f32 v{80+i}, v{80+i}, v{88+i}")
        for i in range(4): e(f"v_add_f32 v{80+i}, v{80+i}, v{84+i}")
        e("v_add_f32 v80, v80, v82"); e("v_add_f32 v81, v81, v83"); e("v_add_f32 v9, v80, v81")
    allred(0)
    e("s_mov_b32 s18, 0x3ae38e39")
    e("v_mul_f32 v11, s18, v9")
    e("v_mov_b32 v9, 0"); e("v_mov_b32 v10, 0")
    for i in range(32): e(f"v_sub_f32 v12, v{40+i}, v11"); e(f"v_fmac_f32 v{9+i%2}, v12, v12")
    e("s_cmp_ge_u32 s3, 2"); e("s_cbranch_scc1 L_k0_b")
    for i in range(32, 40): e(f"v_sub_f32 v12, v{40+i}, v11"); e(f"v_fmac_f32 v{9+i%2}, v12, v12")
    p.label("L_k0_b")
    e("v_add_f32 v9, v9, v10")
    allred(1024)
    e("v_mul_f32 v9, s18, v9")
    def rb(v): e(f"v_cvt_pk_bf16_f32 v{v}, v{v}, v{v}"); e(f"v_lshlrev_b32 v{v}, 16, v{v}")
    rb(11); rb(9)
    e("v_add_f32 v9, 0x3727c5ac, v9"); rb(9)
    e("v_sqrt_f32 v9, v9"); e("s_nop 0"); rb(9)
    e("v_rcp_f32 v9, v9"); e("s_nop 0"); e(f"v_mul_f32 v9, {LOG2E:#x}, v9")
    for i in range(40): e(f"v_sub_f32 v{40+i}, v{40+i}, v11")
    for i in range(40): e(f"v_mul_f32 v{40+i}, v{40+i}, v9")
    for i in range(20): e(f"v_cvt_pk_bf16_f32 v{16+i}, v{40+2*i}, v{41+2*i}")
    e("s_lshr_b32 s16, s2, 2"); e("s_mul_i32 s16, s16, 18"); e("s_add_u32 s16, s16, s3"); e("s_lshl_b32 s16, s16, 12")
    e("s_and_b32 s17, s2, 3"); e("s_lshl_b32 s17, s17, 10"); e("s_add_u32 s16, s16, s17")
    e("v_lshlrev_b32 v5, 4, v2"); e("v_add_u32 v5, s16, v5")
    for i in range(4):
        e(f"s_mov_b32 s17, {16384*i}"); e(f"buffer_store_dwordx4 v[{16+4*i}:{19+4*i}], v5, s[12:15], s17 offen")
    e("s_cmp_ge_u32 s3, 2"); e("s_cbranch_scc1 L_k0_end")
    e("s_mov_b32 s17, 65536"); e("buffer_store_dwordx4 v[32:35], v5, s[12:15], s17 offen")
    p.label("L_k0_end"); e("s_endpgm")
    return p

def gen_k3(name, nparts_s=4, nparts_g=4):
    p = Prog(); e = p.e
    e("s_cmp_ge_u32 s2, 576"); e("s_cbranch_scc1 L_k3_end")
    e("s_load_dwordx2 s[4:5], s[0:1], 0"); e("s_load_dwordx2 s[6:7], s[0:1], 80"); e("s_load_dwordx2 s[20:21], s[0:1], 64")
    e("v_lshrrev_b32 v1, 6, v0"); e("v_and_b32 v2, 63, v0"); e("v_readfirstlane_b32 s3, v1")
    e("s_lshl_b32 s16, s2, 12"); e("v_lshlrev_b32 v5, 4, v0"); e("v_add_u32 v5, s16, v5")
    e("s_waitcnt lgkmcnt(0)")
    np_ = nparts_s + nparts_g
    srd(p, 8, 4, 5, 2359296); srd(p, 12, 6, 7, np_ * PART_SZ, add=PART_OFF); srd(p, 24, 20, 21, 2359296)
    for i in range(np_):
        e(f"s_mov_b32 s17, {i*PART_SZ}"); e(f"buffer_load_dwordx4 v[{16+4*i}:{19+4*i}], v5, s[12:15], s17 offen")
    e("s_lshl_b32 s16, s2, 2"); e("s_add_u32 s16, s16, s3"); e("s_and_b32 s17, s16, 1"); e("s_lshr_b32 s16, s16, 1")
    e("s_mul_i32 s18, s16, 7282"); e("s_lshr_b32 s18, s18, 16"); e("s_mul_i32 s19, s18, 9"); e("s_sub_u32 s19, s16, s19")
    e("s_and_b32 s22, s18, 3"); e("s_lshr_b32 s18, s18, 2")
    e("s_lshl_b32 s18, s18, 6"); e("s_lshl_b32 s17, s17, 5"); e("s_add_u32 s18, s18, s17"); e("s_mul_i32 s18, s18, 1152")
    e("s_mul_i32 s22, s22, 288"); e("s_lshl_b32 s19, s19, 5"); e("s_add_u32 s18, s18, s22"); e("s_add_u32 s18, s18, s19")
    e("v_and_b32 v3, 15, v2"); e("v_mul_u32_u24 v3, 1152, v3"); e("v_lshrrev_b32 v4, 4, v2"); e("v_lshlrev_b32 v4, 3, v4")
    e("v_add_u32 v6, v3, v4"); e("v_add_u32 v6, s18, v6"); e("v_add_u32 v7, 18432, v6")
    e("buffer_load_dwordx2 v[8:9], v6, s[8:11], 0 offen"); e("buffer_load_dwordx2 v[10:11], v7, s[8:11], 0 offen")
    S = 100; G = 108; T = 116
    def accum(dst, first, n):
        for i in range(first, first + n):
            e(f"s_waitcnt vmcnt({np_ + 2 - 1 - i})")
            for j in range(4):
                src = 16 + 4 * i + j
                if i == first:
                    e(f"v_lshlrev_b32 v{dst+2*j}, 16, v{src}"); e(f"v_and_b32 v{dst+2*j+1}, 0xffff0000, v{src}")
                else:
                    e(f"v_lshlrev_b32 v{T}, 16, v{src}"); e(f"v_and_b32 v{T+1}, 0xffff0000, v{src}")
                    e(f"v_add_f32 v{dst+2*j}, v{dst+2*j}, v{T}"); e(f"v_add_f32 v{dst+2*j+1}, v{dst+2*j+1}, v{T+1}")
    accum(S, 0, nparts_s); accum(G, nparts_s, nparts_g)
    for j in range(8): e(f"v_exp_f32_e64 v{T+j}, -v{G+j}")
    for j in range(8): e(f"v_add_f32 v{T+j}, 1.0, v{T+j}")
    for j in range(8): e(f"v_rcp_f32 v{T+j}, v{T+j}")
    for j in range(8): e(f"v_mul_f32 v{G+j}, {LN2:#x}, v{G+j}")
    for j in range(8): e(f"v_mul_f32 v{G+j}, v{G+j}, v{T+j}")
    e("s_waitcnt vmcnt(0)")
    for j in range(4):
        e(f"v_lshlrev_b32 v{T+2*j}, 16, v{8+j}"); e(f"v_and_b32 v{T+2*j+1}, 0xffff0000, v{8+j}")
    for j in range(8): e(f"v_fmac_f32 v{T+j}, v{S+j}, v{G+j}")
    for j in range(4): e(f"v_cvt_pk_bf16_f32 v{8+j}, v{T+2*j}, v{T+2*j+1}")
    e("buffer_store_dwordx2 v[8:9], v6, s[24:27], 0 offen"); e("buffer_store_dwordx2 v[10:11], v7, s[24:27], 0 offen")
    p.label("L_k3_end"); e("s_endpgm")
    return p
```

```python
from asmlib import *
from k0k3 import *
from k2 import stamp, prof_dump

G1_BASE = 65536; G1_SLOT = 17408; G1_NS = 5
FLAG_LDS = 163824
def gen_k1(name, prof=False):
    p = Prog(); e = p.e
    WQB = [1, 5]; W1B = [9, 10]; WQV = 11; W1V = 13; VL16 = 16; KV_ = 17; VV_ = 19; KB = 21; VBs = 25; ONES = 34; VL8 = 33
    AF = 48; RING = 6
    FA = 112; SS = [192, 224]; PP = [160, 176]; NEGM = 144; QF = 80
    e("s_cmp_ge_u32 s2, 256"); e("s_cbranch_scc1 L_k1_end")
    if prof: stamp(p, 0)
    e("s_load_dwordx4 s[44:47], s[0:1], 8")
    e("s_load_dwordx2 s[48:49], s[0:1], 24")
    e("s_load_dwordx2 s[52:53], s[0:1], 48")
    e("s_load_dwordx2 s[54:55], s[0:1], 80")
    e("v_lshrrev_b32 v38, 6, v0"); e("v_and_b32 v39, 63, v0"); e("v_readfirstlane_b32 s3, v38")
    e("s_and_b32 s4, s2, 7"); e("s_lshl_b32 s4, s4, 2"); e("s_bfe_u32 s5, s2, 0x20003"); e("s_add_u32 s4, s4, s5")
    e("s_lshr_b32 s5, s2, 5"); e("s_lshl_b32 s5, s5, 2"); e("s_add_u32 s5, s5, s3")
    L = "v39"
    e(f"v_lshrrev_b32 v40, 4, {L}"); e(f"v_bfe_u32 v41, {L}, 2, 2"); e(f"v_and_b32 v42, 3, {L}"); e(f"v_bfe_u32 v43, {L}, 2, 3"); e(f"v_lshrrev_b32 v44, 2, {L}")
    e(f"v_lshlrev_b32 v{VL16}, 4, {L}")
    e("v_lshrrev_b32 v45, 1, v42"); e("v_xor_b32 v45, v45, v43"); e("v_lshlrev_b32 v45, 5, v45"); e("v_lshlrev_b32 v46, 8, v44"); e("v_add_u32 v45, v45, v46")
    e("v_and_b32 v46, 1, v42"); e("v_lshlrev_b32 v46, 4, v46"); e("v_add_u32 v45, v45, v46")
    for u in range(4):
        e(f"v_xor_b32 v46, {64*u}, v45"); e(f"v_add_u32 v{WQB[0]+u}, {G1_BASE}, v46"); e(f"v_add_u32 v{WQB[1]+u}, {G1_BASE+3*G1_SLOT}, v46")
    e("v_mul_u32_u24 v45, 288, v44"); e("v_lshlrev_b32 v46, 3, v42"); e("v_add_u32 v45, v45, v46")
    e(f"v_add_u32 v{W1B[0]}, {G1_BASE+8192}, v45"); e(f"v_add_u32 v{W1B[1]}, {G1_BASE+3*G1_SLOT+8192}, v45")
    e("v_lshlrev_b32 v45, 5, v43"); e("v_lshlrev_b32 v46, 8, v44"); e("v_add_u32 v45, v45, v46"); e("v_lshlrev_b32 v46, 3, v42"); e("v_add_u32 v45, v45, v46"); e("v_add_u32 v45, 8192, v45")
    for t in range(8): e(f"v_xor_b32 v{VBs+t}, {32*t}, v45")
    e(f"v_and_b32 v45, 15, {L}"); e("v_xor_b32 v46, v40, v45"); e("v_lshlrev_b32 v46, 4, v46"); e("v_lshlrev_b32 v45, 8, v45"); e("v_add_u32 v45, v45, v46")
    for s in range(4): e(f"v_xor_b32 v{KB+s}, {64*s}, v45")
    e(f"v_and_b32 v45, 15, {L}")
    e("s_and_b32 s6, s3, 1"); e("s_lshr_b32 s7, s3, 1")
    for a in range(2):
        e(f"s_lshl_b32 s56, s6, 4"); e(f"s_lshl_b32 s57, s7, 2"); e("s_add_u32 s56, s56, s57"); e(f"s_add_u32 s56, s56, {8*a}")
        e("v_add_u32 v46, s56, v40"); e("v_lshlrev_b32 v46, 13, v46")
        e(f"v_lshlrev_b32 v47, 1, v40"); e(f"v_xor_b32 v47, {8*a}, v47"); e("v_xor_b32 v47, v47, v45"); e("v_lshlrev_b32 v47, 4, v47")
        e(f"v_add_u32 v{WQV+a}, v46, v47")
        if a: e(f"v_subrev_u32 v{WQV+a}, 1024, v{WQV+a}")
        e("s_lshl_b32 s56, s3, 11"); e("v_lshlrev_b32 v46, 8, v40"); e("v_add_u32 v46, s56, v46"); e(f"v_add_u32 v{VV_+a}, v46, v47")
        e("s_lshl_b32 s57, s6, 3"); e(f"s_add_u32 s57, s57, {4*a}"); e("v_add_u32 v47, s57, v40"); e("v_xor_b32 v47, v47, v45"); e("v_lshlrev_b32 v47, 4, v47")
        e(f"v_add_u32 v{KV_+a}, v46, v47")
    e("s_mul_i32 s56, s3, 144"); e("s_and_b32 s57, s4, 1"); e("s_lshl_b32 s58, s57, 1")
    for i in range(3):
        e(f"s_add_u32 s59, s56, {64*i}"); e(f"v_add_u32 v45, s59, {L}")
        e("v_mul_u32_u24 v46, 3641, v45"); e("v_lshrrev_b32 v46, 16, v46"); e("v_mul_u32_u24 v47, 18, v46"); e("v_sub_u32 v45, v45, v47")
        e("v_add_u32 v45, s58, v45"); e("v_subrev_u32 v47, 18, v45"); e("v_min_u32 v45, v45, v47"); e("v_lshlrev_b32 v45, 4, v45")
        e("v_bfe_u32 v47, v46, 2, 2"); e("v_lshlrev_b32 v47, 3, v47"); e("v_and_b32 v72, 3, v46"); e("v_add_u32 v47, v47, v72")
        e("v_lshrrev_b32 v46, 4, v46"); e("v_lshlrev_b32 v46, 2, v46"); e("v_add_u32 v47, v47, v46"); e("v_mul_u32_u24 v47, 9216, v47")
        e(f"v_add_u32 v{W1V+i}, v47, v45")
        if i: e(f"v_subrev_u32 v{W1V+i}, {1024*i}, v{W1V+i}")
    e("s_lshl_b32 s58, s57, 3"); e(f"v_add_u32 v{VL8}, s58, v{VL16}")
    for i in range(4): e(f"v_mov_b32 v{ONES+i}, 0x3f803f80")
    e("s_waitcnt lgkmcnt(0)")
    e("s_lshl_b32 s56, s4, 8"); e("s_sub_u32 s58, 4718592, s56"); srd(p, 8, 48, 49, "s58", add="s56")
    e("s_mul_i32 s56, s4, 288"); e("s_sub_u32 s58, 5308416, s56"); srd(p, 12, 52, 53, "s58", add="s56")
    e("s_mul_i32 s56, s5, 73728"); srd(p, 16, 54, 55, 73728, add="s56")
    e("s_lshr_b32 s56, s4, 1"); e("s_lshl_b32 s56, s56, 19"); e("s_add_u32 s56, s56, 393216")
    srd(p, 20, 44, 45, 131072, add="s56"); srd(p, 24, 46, 47, 131072, add="s56")
    e("s_mul_i32 s56, s5, 144"); e("s_lshr_b32 s58, s4, 1"); e("s_mul_i32 s58, s58, 9"); e("s_add_u32 s56, s56, s58"); e("s_lshl_b32 s56, s56, 12"); e(f"s_add_u32 s56, s56, {HF_OFF}")
    srd(p, 28, 54, 55, 36864, add="s56")
    e("s_lshl_b32 s56, s5, 7"); e("s_lshl_b32 s58, s4, 2"); e("s_add_u32 s56, s56, s58"); e("s_lshl_b32 s56, s56, 12"); e(f"s_add_u32 s56, s56, {OF_OFF}")
    srd(p, 32, 54, 55, 16384, add="s56")
    e("s_mul_i32 s43, s57, 20480")
    e("s_mov_b32 s36, 0"); e("s_mov_b32 s37, 0"); e("s_mov_b32 s38, 0")
    e("s_lshl_b32 s42, s3, 11"); e(f"s_add_u32 s40, s42, {G1_BASE}"); e("s_mul_i32 s41, s3, 2304"); e(f"s_add_u32 s41, s41, {G1_BASE+8192}")
    e("s_mov_b32 s50, 0")
    def w_dma(ks):
        sl = (ks % G1_NS) * G1_SLOT; tok = ("W", ks)
        def masked(pp):
            pp.e("s_mov_b64 exec, 0xffff"); pp.vmem(f"buffer_load_dwordx4 v{W1V+2}, s[12:15], s37 offen offset:2048 lds", tok); pp.e("s_mov_b64 exec, -1")
        return [f"s_add_u32 m0, s41, {sl}",
                ("V", f"buffer_load_dwordx4 v{W1V}, s[12:15], s37 offen lds", tok),
                ("V", f"buffer_load_dwordx4 v{W1V+1}, s[12:15], s37 offen offset:1024 lds", tok),
                masked, "s_add_u32 s37, s37, 294912",
                f"s_add_u32 m0, s40, {sl}",
                ("V", f"buffer_load_dwordx4 v{WQV}, s[8:11], s36 offen lds", tok),
                ("V", f"buffer_load_dwordx4 v{WQV+1}, s[8:11], s36 offen offset:1024 lds", tok),
                "s_add_u32 s36, s36, 262144"]
    def b_ld(ks):
        return [("V", f"buffer_load_dwordx4 a[{128+16*(ks%4)+4*rh}:{131+16*(ks%4)+4*rh}], v{VL16}, s[16:19], s38 offen offset:{1024*rh}", ("B", ks)) for rh in range(4)] + ["s_add_u32 s38, s38, 4096"]
    def kv_dma(which, b):
        sl = (b % 4) * 16384 + (8192 if which == "V" else 0); vo, srd_ = (VV_, 24) if which == "V" else (KV_, 20)
        return [f"s_add_u32 m0, s42, {sl}", f"s_mov_b32 s39, {8192*b}",
                ("V", f"buffer_load_dwordx4 v{vo}, s[{srd_}:{srd_+3}], s39 offen lds", (which, b)),
                ("V", f"buffer_load_dwordx4 v{vo+1}, s[{srd_}:{srd_+3}], s39 offen offset:1024 lds", (which, b))]
    for ks in range(4):
        for x in w_dma(ks): p.put(x)
        if ks < 3:
            for x in b_ld(ks): p.put(x)
    e(f"v_mov_b32 v45, {FLAG_LDS}"); e("v_mov_b32 v46, 0"); p.lds("ds_write_b32 v45, v46")
    fr = [(ks, t) for ks in range(18) for t in range(17)]
    DIST = 4
    def rd(f, half):
        ks, t = fr[f]; sl = ks % G1_NS; win = sl // 3; off = (sl % 3) * G1_SLOT
        r = AF + 4 * (f % RING) + 2 * half
        if t < 9: return ("L", f"ds_read_b64_tr_b16 v[{r}:{r+1}], v{W1B[win]} offset:{off + 32*t + 4608*half}", ("A", f))
        u, T = divmod(t - 9, 2)
        return ("L", f"ds_read_b64_tr_b16 v[{r}:{r+1}], v{WQB[win]+u} offset:{off + 8*T + 4096*half}", ("A", f))
    p.wait(vm={("W", 1), ("B", 0)}); e("s_barrier")
    if prof: stamp(p, 1)
    for f in range(DIST): p.put(rd(f, 0)); p.put(rd(f, 1))
    mf = []
    for f, (ks, t) in enumerate(fr):
        a = AF + 4 * (f % RING)
        for rh in range(4):
            d = f"v[{FA+16*t+4*rh}:{FA+16*t+4*rh+3}]" if t < 9 else f"a[{16*(t-9)+4*rh}:{16*(t-9)+4*rh+3}]"
            b = 128 + 16 * (ks % 4) + 4 * rh
            m = dict(text=f"v_mfma_f32_16x16x32_bf16 {d}, v[{a}:{a+3}], a[{b}:{b+3}], {'0' if ks == 0 else d}")
            if rh == 0:
                if f % 2 == 0: m["lg"] = {("A", f), ("A", f + 1)}
                if t == 0: m["vm"] = {("B", ks)}
            mf.append(m)
    qr = Q(); qv = Q()
    for f in range(DIST, len(fr)):
        g0 = 4 * (f - DIST); qr.add(rd(f, 0), g0 - 4, g0 + 1); qr.add(rd(f, 1), g0 - 4, g0 + 2)
    kvpre = {14: [("K", 0), ("K", 1)], 15: [("V", 0), ("K", 2)], 16: [("V", 1), ("K", 3)]}
    for ks in range(18):
        g0 = 68 * ks
        if ks > 0: qv.add(("B", {("W", ks + 1)}), g0 - 1, g0 - 1)
        items = []
        if ks + 3 < 18: items += b_ld(ks + 3)
        if ks + 4 < 18: items += w_dma(ks + 4)
        for w, b in kvpre.get(ks, []): items += kv_dma(w, b)
        for k, x in enumerate(items): qv.add(x, g0 + 1 + 4 * k, g0 + 3 + 4 * k)
    st = []
    schedule(p, mf, [qr, qv], stats=st)
    if prof: stamp(p, 2)
    e("s_nop 7")
    TT = 72; nq = 0
    def silu8(regs, dst):
        n = len(regs); tt = [38 + i for i in range(n)]
        for i in range(n): e(f"v_exp_f32_e64 v{tt[i]}, -v{regs[i]}")
        for i in range(n): e(f"v_add_f32 v{tt[i]}, 1.0, v{tt[i]}")
        for i in range(n): e(f"v_rcp_f32 v{tt[i]}, v{tt[i]}")
        for i in range(n): e(f"v_mul_f32 v{regs[i]}, v{regs[i]}, v{tt[i]}")
        for i in range(n // 2): e(f"v_cvt_pk_bf16_f32 v{dst+i}, v{regs[2*i]}, v{regs[2*i+1]}")
    for pr in range(4):
        e(f"s_add_u32 s39, s43, {4096*pr}")
        for rh in range(4):
            dst = TT + 4 * (nq % 2); nq += 1
            silu8([FA + 32 * pr + 4 * rh + i for i in range(4)] + [FA + 32 * pr + 16 + 4 * rh + i for i in range(4)], dst)
            p.vmem(f"buffer_store_dwordx4 v[{dst}:{dst+3}], v{VL16}, s[28:31], s39 offen offset:{1024*rh}")
    e("s_mov_b32 s39, 16384")
    for rp in range(2):
        dst = TT + 4 * (nq % 2); nq += 1
        silu8([FA + 128 + 8 * rp + i for i in range(8)], dst)
        for k in range(2): p.vmem(f"buffer_store_dwordx2 v[{dst+2*k}:{dst+2*k+1}], v{VL8}, s[28:31], s39 offen offset:{1024*(2*rp+k)}")
    e("s_mov_b32 s51, 0x3db504f3")
    for u in range(4):
        for rh in range(4):
            src = [16 * (2 * u + T) + 4 * rh + i for T in range(2) for i in range(4)]
            for i in range(8): e(f"v_accvgpr_read_b32 v{38+i}, a{src[i]}")
            for i in range(8): e(f"v_mul_f32 v{38+i}, s51, v{38+i}")
            for i in range(4): e(f"v_cvt_pk_bf16_f32 v{QF+16*u+4*rh+i}, v{38+2*i}, v{39+2*i}")
    if prof: stamp(p, 3)
    def kfr(b): return [("K", b, T, s) for T in range(2) for s in range(4)]
    def vfr(b): return [("V", b, t) for t in range(8)]
    def areads(x, slot):
        r = AF + 4 * slot; sl = (x[1] % 4) * 16384
        if x[0] == "K": return [("L", f"ds_read_b128 v[{r}:{r+3}], v{KB+x[3]} offset:{sl + 4096*x[2]}", x)]
        return [("L", f"ds_read_b64_tr_b16 v[{r+2*h}:{r+2*h+1}], v{VBs+x[2]} offset:{sl + 4096*h}", x) for h in range(2)]
    def amf(x, slot, czero=False):
        a = AF + 4 * slot; out = []
        for rh in range(4):
            if x[0] == "K":
                _, b, T, s = x; d = SS[b % 2] + 16 * T + 4 * rh; q = QF + 16 * s + 4 * rh
                c = (("0" if czero else f"v[{NEGM+4*rh}:{NEGM+4*rh+3}]") if s == 0 else f"v[{d}:{d+3}]")
                out.append(f"v_mfma_f32_16x16x32_bf16 v[{d}:{d+3}], v[{a}:{a+3}], v[{q}:{q+3}], {c}")
            else:
                _, b, t = x; d = 16 * t + 4 * rh; pb = PP[b % 2] + 4 * rh
                out.append(f"v_mfma_f32_16x16x32_bf16 a[{d}:{d+3}], v[{a}:{a+3}], v[{pb}:{pb+3}], {'0' if b == 0 else f'a[{d}:{d+3}]'}")
        return out
    def rowmax(dst, srcs, tmp):
        e(f"v_max3_f32 v{dst}, v{srcs[0]}, v{srcs[1]}, v{srcs[2]}")
        k = 3
        while k + 1 < len(srcs): e(f"v_max3_f32 v{dst}, v{dst}, v{srcs[k]}, v{srcs[k+1]}"); k += 2
        if k < len(srcs): e(f"v_max_f32 v{dst}, v{dst}, v{srcs[k]}")
    def xmax_negm():
        for sw in ("v_permlane32_swap_b32", "v_permlane16_swap_b32"):
            for rh in range(4): e(f"v_mov_b32 v{42+rh}, v{38+rh}")
            for rh in range(4): e(f"{sw} v{38+rh}, v{42+rh}")
            for rh in range(4): e(f"v_max_f32 v{38+rh}, v{38+rh}, v{42+rh}")
        for rh in range(4):
            for i in range(4): e(f"v_sub_f32 v{NEGM+4*rh+i}, 0, v{38+rh}")
    p.label("L_k1_attn")
    p.wait(vm={("K", 1), ("V", 0)}); e("s_barrier")
    seq = kfr(0)
    for i, x in enumerate(seq[:RING]):
        for it in areads(x, i): p.put(it)
    for i, x in enumerate(seq):
        p.wait(lg={x})
        for t in amf(x, i % RING, czero=True): e(t)
        if i + RING < 8:
            for it in areads(seq[i + RING], i % RING): p.put(it)
    seq = kfr(1)
    for i in range(1, 15): seq += vfr(i - 1) + kfr(i + 1)
    seq += vfr(14) + vfr(15)
    S0 = 8 % RING
    DISTA = 4
    for i in range(DISTA):
        for it in areads(seq[i], (S0 + i) % RING): p.put(it)
    e("s_cmp_lg_u32 s50, 0"); e("s_cbranch_scc1 L_k1_havemax")
    e("s_nop 4")
    for rh in range(4): rowmax(38 + rh, [SS[0] + 16 * T + 4 * rh + i for T in range(2) for i in range(4)], None)
    xmax_negm()
    p.label("L_k1_havemax")
    e("s_nop 7")
    mf = []; first = {}; lastm = {}
    for i, x in enumerate(seq):
        key = (x[0], x[1]); first.setdefault(key, len(mf))
        for rh, t in enumerate(amf(x, (S0 + i) % RING)):
            m = dict(text=t)
            if rh == 0 and i % 2 == 0: m["lg"] = {x} | ({seq[i + 1]} if i + 1 < len(seq) else set())
            mf.append(m)
        lastm[x] = len(mf) - 1
        if x[0] == "V" and x[2] == 3:
            for rh in range(4):
                pb = PP[x[1] % 2] + 4 * rh; d = 128 + 4 * rh
                mf.append(dict(text=f"v_mfma_f32_16x16x32_bf16 a[{d}:{d+3}], v[{ONES}:{ONES+3}], v[{pb}:{pb+3}], {'0' if x[1] == 0 else f'a[{d}:{d+3}]'}"))
    fstart = {}
    n = 0
    for i, x in enumerate(seq):
        fstart[i] = lastm[x] - 3
    qr = Q(); qv = Q(); qx = Q()
    for i in range(DISTA, len(seq)):
        lo = lastm[seq[i - RING]] if i >= RING else -1
        lo = max(lo, fstart[i - DISTA] - 3)
        for k, it in enumerate(areads(seq[i], (S0 + i) % RING)): qr.add(it, lo, fstart[i - DISTA] + 2 + k)
    for b in range(16):
        s = SS[b % 2]; dl = first[("V", b)] - 2
        for T in range(2):
            lo = -1 if b == 0 else lastm[("K", b, T, 3)] + 3
            if b >= 1: lo_p = lastm[("V", b - 2, 7)] if b >= 2 else -1
            else: lo_p = -1
            for rh in range(4):
                rs = [s + 16 * T + 4 * rh + i for i in range(4)]
                if b == 0:
                    for r_ in rs: qx.add(f"v_add_f32 v{r_}, v{r_}, v{NEGM+4*rh}", lo, dl)
                for r_ in rs: qx.add(f"v_exp_f32 v{r_}, v{r_}", lo + rh, dl)
                if rh > 0 or T > 0:
                    for it in pend: qx.add(it, max(lo, lo_p), dl)
                pend = [f"v_cvt_pk_bf16_f32 v{PP[b%2]+4*rh+2*T+k}, v{rs[2*k]}, v{rs[2*k+1]}" for k in range(2)]
        for it in pend: qx.add(it, -1, dl)
    for i in range(0, 16):
        g0 = (first[("V", i - 1)] if i > 0 else 0) - 1
        need = set()
        if i + 1 < 16: need.add(("K", i + 1))
        need.add(("V", i))
        qv.add(("B", need), g0, g0)
        items = []
        if i + 2 < 16: items += kv_dma("V", i + 2)
        if i + 4 < 16: items += kv_dma("K", i + 4)
        for k, x in enumerate(items): qv.add(x, g0 + 2 + 3 * k, g0 + 8 + 4 * k)
    schedule(p, mf, [qr, qv, qx], stats=st)
    if prof: stamp(p, 4)
    e("s_nop 7")
    for rh in range(4): e(f"v_accvgpr_read_b32 v{72+rh}, a{128+4*rh}")
    e("s_mov_b32 s51, 0x4e800000")
    e("v_max3_f32 v38, v72, v73, v74"); e("v_max_f32 v38, v38, v75"); e("v_add_f32 v39, v72, v73"); e("v_add_f32 v40, v74, v75"); e("v_add_f32 v39, v39, v40")
    e("v_cmp_ngt_f32 vcc, s51, v39")
    for rh in range(4): e(f"v_rcp_f32 v{72+rh}, v{72+rh}")
    e("s_mov_b64 s[60:61], vcc")
    nq = 0
    for u in range(4):
        e(f"s_mov_b32 s39, {4096*u}")
        for rh in range(4):
            src = [16 * (2 * u + T) + 4 * rh + i for T in range(2) for i in range(4)]
            dst = 48 + 4 * (nq % 2); nq += 1
            for i in range(8): e(f"v_accvgpr_read_b32 v{38+i}, a{src[i]}")
            for i in range(8): e(f"v_mul_f32 v{38+i}, v{38+i}, v{72+rh}")
            for i in range(4): e(f"v_cvt_pk_bf16_f32 v{dst+i}, v{38+2*i}, v{39+2*i}")
            p.vmem(f"buffer_store_dwordx4 v[{dst}:{dst+3}], v{VL16}, s[32:35], s39 offen offset:{1024*rh}")
    e("s_cmp_lg_u32 s50, 0"); e("s_cbranch_scc1 L_k1_done")
    e(f"v_mov_b32 v45, {FLAG_LDS}"); e("v_mov_b32 v46, 1")
    e("s_cmp_eq_u64 s[60:61], 0"); e("s_cbranch_scc1 L_k1_novote")
    e("ds_write_b32 v45, v46"); e("s_waitcnt lgkmcnt(0)")
    p.label("L_k1_novote")
    e("s_barrier"); e("ds_read_b32 v46, v45"); e("s_waitcnt lgkmcnt(0)"); e("v_readfirstlane_b32 s50, v46"); e("s_nop 3")
    e("s_cmp_eq_u32 s50, 0"); e("s_cbranch_scc1 L_k1_done")
    p.waitall()
    for rh in range(4): e(f"v_mov_b32 v{38+rh}, 0xff800000")
    e("s_mov_b32 s39, 0")
    p.label("L_k1_maxloop")
    e("s_barrier"); e("s_mov_b32 m0, s42"); e("s_nop 0")
    e(f"buffer_load_dwordx4 v{KV_}, s[20:23], s39 offen lds"); e(f"buffer_load_dwordx4 v{KV_+1}, s[20:23], s39 offen offset:1024 lds")
    e("s_waitcnt vmcnt(0)"); e("s_barrier")
    for i, x in enumerate(kfr(0)):
        p.put(areads(x, i % RING)[0]); p.waitall(vm=False)
        for t in amf(x, i % RING, czero=True): e(t)
    e("s_nop 7")
    for rh in range(4): rowmax(42, [SS[0] + 16 * T + 4 * rh + i for T in range(2) for i in range(4)], None); e(f"v_max_f32 v{38+rh}, v{38+rh}, v42")
    e("s_add_u32 s39, s39, 8192"); e("s_cmp_lt_u32 s39, 131072"); e("s_cbranch_scc1 L_k1_maxloop")
    xmax_negm()
    e("s_barrier")
    for w, b in [("K", 0), ("K", 1), ("V", 0), ("K", 2), ("V", 1), ("K", 3)]:
        for x in kv_dma(w, b): p.put(x)
    p.waitall()
    e("s_branch L_k1_attn")
    p.label("L_k1_done")
    if prof:
        p.waitall(); stamp(p, 5); prof_dump(p, 6, 54, 0x8000000)
    p.label("L_k1_end"); e("s_endpgm")
    print("k1 sched", st)
    return p
```

```python
from asmlib import *
from k0k3 import *

def stamp(p, idx):
    p.e(f"s_memtime s[{84+2*idx}:{85+2*idx}]")

def gen_k2(name, prof=False):
    p = Prog(); e = p.e
    AF = 12; RING = 4; DIST = 3; BF = 32; VOFF = 100; VRD = 1; VRD0 = 2; VB = 3
    e("s_cmp_ge_u32 s2, 256"); e("s_cbranch_scc1 L_k2_end")
    if prof: stamp(p, 0)
    e("s_load_dwordx2 s[4:5], s[0:1], 32"); e("s_load_dwordx2 s[6:7], s[0:1], 56"); e("s_load_dwordx2 s[20:21], s[0:1], 80")
    e("v_lshrrev_b32 v4, 6, v0"); e("v_and_b32 v5, 63, v0"); e("v_readfirstlane_b32 s3, v4")
    e("s_and_b32 s22, s2, 3")
    e("s_bfe_u32 s23, s2, 0x10002")
    e("s_bfe_u32 s24, s2, 0x20003")
    e("s_lshr_b32 s25, s2, 5")
    e("s_lshl_b32 s26, s23, 2"); e("s_add_u32 s26, s26, 32")
    e("v_lshrrev_b32 v6, 2, v5"); e(f"v_mul_u32_u24 v{VRD0}, 288, v6"); e("v_and_b32 v6, 3, v5"); e("v_lshlrev_b32 v6, 3, v6"); e(f"v_add_u32 v{VRD0}, v{VRD0}, v6")
    e(f"v_mov_b32 v{VRD}, v{VRD0}")
    e(f"v_lshlrev_b32 v{VB}, 4, v5")
    for i in range(9):
        e(f"v_add_u32 v6, {64*i}, v5"); e("v_mul_u32_u24 v7, 3641, v6"); e("v_lshrrev_b32 v7, 16, v7")
        e("v_mul_u32_u24 v8, 18, v7"); e("v_sub_u32 v8, v6, v8"); e("v_mul_u32_u24 v7, 1152, v7"); e("v_lshlrev_b32 v8, 4, v8")
        e(f"v_add_u32 v{VOFF+i}, v7, v8")
        if i % 4: e(f"v_subrev_u32 v{VOFF+i}, {1024*(i%4)}, v{VOFF+i}")
    e("s_waitcnt lgkmcnt(0)")
    e("s_cmp_eq_u32 s23, 0"); e("s_cselect_b32 s4, s4, s6"); e("s_cselect_b32 s5, s5, s7")
    e(f"s_mov_b32 s27, {HF_OFF}"); e(f"s_cselect_b32 s27, {OF_OFF}, s27")
    e("s_mul_i32 s28, s26, 36864")
    e("s_mul_i32 s29, s28, s22"); e("s_mul_i32 s30, s24, 288"); e("s_add_u32 s29, s29, s30"); e("s_sub_u32 s28, s28, s30")
    srd(p, 8, 4, 5, "s28", add="s29")
    e("s_lshl_b32 s29, s25, 2"); e("s_add_u32 s29, s29, s3")
    e("s_lshl_b32 s30, s29, 2"); e("s_add_u32 s30, s30, s22"); e("s_mul_i32 s30, s30, s26"); e("s_lshl_b32 s30, s30, 12"); e("s_add_u32 s30, s30, s27")
    e("s_lshl_b32 s28, s26, 12")
    srd(p, 12, 20, 21, "s28", add="s30")
    e("s_and_b32 s30, s2, 7"); e(f"s_mul_i32 s30, s30, {PART_SZ}"); e("s_lshl_b32 s31, s29, 2"); e("s_add_u32 s31, s31, s24"); e("s_mul_i32 s31, s31, 18432")
    e("s_add_u32 s30, s30, s31"); e(f"s_add_u32 s30, s30, {PART_OFF}")
    srd(p, 16, 20, 21, 18432, add="s30")
    e("s_mul_i32 s34, s3, 36864")
    e("s_mul_i32 s35, s3, 9216")
    e("s_mov_b32 s38, s35")
    e("s_mov_b32 s39, 0")
    e("s_mov_b32 s40, 0")
    e("s_lshr_b32 s37, s26, 2")
    def dma(i, tok):
        out = []
        if i % 4 == 0: out.append(f"s_add_u32 m0, s38, {1024*i}")
        out.append(("V", f"buffer_load_dwordx4 v{VOFF+i}, s[8:11], s34 offen offset:{1024*(i%4)} lds", tok))
        return out
    def dma_adv():
        return ["s_add_u32 s34, s34, 147456", "s_add_u32 s38, s38, 36864", "s_add_u32 s41, s35, 147456", "s_cmp_eq_u32 s38, s41", "s_cselect_b32 s38, s35, s38"]
    def bl(ks, rh, tok):
        b = BF + 16 * (ks % 4) + 4 * rh
        return ("V", f"buffer_load_dwordx4 v[{b}:{b+3}], v{VB}, s[12:15], s39 offen offset:{1024*rh}", tok)
    for g in range(2):
        for i in range(9):
            for x in dma(i, ("W", g)): p.put(x)
        for x in dma_adv(): e(x)
    for ks in range(3):
        for i in range(3 * ks, 3 * ks + 3):
            for x in dma(i, ("W", 2)): p.put(x)
        for rh in range(4): p.put(bl(ks, rh, ("B", ks)))
        e("s_add_u32 s39, s39, 4096")
    for x in dma_adv(): e(x)
    for i in range(144): e(f"v_accvgpr_write_b32 a{i}, 0")
    N = 36
    def rd(f, half):
        ks, t = divmod(f % N, 9)
        r = AF + 4 * (f % RING) + 2 * half
        return ("L", f"ds_read_b64_tr_b16 v[{r}:{r+1}], v{VRD} offset:{ks*9216 + t*32 + half*4608}", ("A", f % N))
    p.wait(vm={("W", 1), ("B", 0)}); e("s_barrier")
    if prof: stamp(p, 1)
    for f in range(DIST): p.put(rd(f, 0)); p.put(rd(f, 1))
    entry_vm = [t for t in p.vm]; entry_lg = list(p.lg)
    e(".p2align 6"); p.label("L_k2_loop")
    mf = []
    for f in range(N):
        ks, t = divmod(f, 9); a = AF + 4 * (f % RING)
        for rh in range(4):
            c = 4 * (4 * t + rh); b = BF + 16 * ks + 4 * rh
            m = dict(text=f"v_mfma_f32_16x16x32_bf16 a[{c}:{c+3}], v[{a}:{a+3}], v[{b}:{b+3}], a[{c}:{c+3}]")
            if rh == 0:
                m["lg"] = {("A", f)}
                if t == 0: m["vm"] = {("B", ks)}
            mf.append(m)
    qr = Q("rd"); qv = Q("vm")
    for f in range(DIST, N + DIST):
        g0 = 4 * (f - DIST)
        if f == N:
            for x in ["s_add_u32 s40, s40, 36864", "s_cmp_eq_u32 s40, 147456", "s_cselect_b32 s40, 0, s40", f"v_add_u32 v{VRD}, s40, v{VRD0}"]:
                qr.add(x, g0 - 4, g0)
        qr.add(rd(f, 0), g0, g0 + 1); qr.add(rd(f, 1), g0, g0 + 2)
    for ks in range(4):
        g0 = 36 * ks
        for rh in range(4): qv.add(bl(ks + 3, rh, ("B", (ks + 3) % 4 + (0 if ks + 3 < 4 else 100))), g0 + 2 + 4 * rh, g0 + 3 + 4 * rh)
        qv.add("s_add_u32 s39, s39, 4096", g0 + 15, g0 + 18)
        if ks < 3:
            for j in range(3):
                for x in dma(3 * ks + j, ("W", 103)): qv.add(x, g0 + 18 + 4 * j, g0 + 19 + 4 * j)
        else:
            for k, x in enumerate(dma_adv()): qv.add(x, g0 + 18 + k, g0 + 30)
    st = []
    schedule(p, mf, [qr, qv], stats=st)
    ren = lambda t: (t[0], t[1] - 100 if t[0] == "B" and t[1] >= 100 else (2 if t == ("W", 103) else t[1]))
    p.vm = [ren(t) for t in p.vm]
    p.wait(vm={("B", 0)}); e("s_barrier")
    assert p.vm == entry_vm and p.lg == entry_lg, (p.vm, entry_vm, p.lg, entry_lg)
    e("s_sub_u32 s37, s37, 1"); e("s_cmp_lg_u32 s37, 0"); e("s_cbranch_scc1 L_k2_loop")
    if prof: stamp(p, 2)
    p.waitall()
    e("s_nop 7")
    for t in range(9):
        T = 32 + 16 * (t % 2)
        for j in range(16): e(f"v_accvgpr_read_b32 v{64+j}, a{16*t+j}")
        for j in range(8): e(f"v_cvt_pk_bf16_f32 v{T+j}, v{64+2*j}, v{65+2*j}")
        e(f"s_mov_b32 s39, {2048*t}")
        for pr in range(2): p.vmem(f"buffer_store_dwordx4 v[{T+4*pr}:{T+4*pr+3}], v{VB}, s[16:19], s39 offen offset:{1024*pr}")
    if prof:
        p.waitall(); stamp(p, 3); prof_dump(p, 4, 20, 0x8000000 + 0x100000)
    p.label("L_k2_end"); e("s_endpgm")
    print("k2 sched", st)
    return p

def prof_dump(p, n, wsreg, off):
    e = p.e
    e("s_memrealtime s[82:83]"); e("s_waitcnt lgkmcnt(0)")
    e(f"s_add_u32 s72, s{wsreg}, {off}"); e(f"s_addc_u32 s73, s{wsreg+1}, 0"); e("s_mov_b32 s74, 0x100000"); e("s_mov_b32 s75, 0x20000")
    e("s_lshl_b32 s76, s2, 2"); e("s_add_u32 s76, s76, s3"); e("s_lshl_b32 s76, s76, 6"); e("v_mov_b32 v4, s76")
    e("s_mov_b64 exec, 1")
    for i in range(n):
        e(f"v_mov_b32 v5, s{84+2*i}"); e(f"buffer_store_dword v5, v4, s[72:75], 0 offen offset:{4*i}")
    e("v_mov_b32 v5, s82"); e(f"buffer_store_dword v5, v4, s[72:75], 0 offen offset:60")
    e("s_waitcnt vmcnt(0)")
```

```python
import sys
sys.path.insert(0, "gen")
from asmlib import *
from k0k3 import *
from k1 import gen_k1
from k2 import gen_k2
def build(path, prof=False):
    ks = [("ln_kernel", gen_k0("ln"), (128, 256, 2048), dict(vgpr=128, accum=128)),
          ("p1_kernel", gen_k1("p1", prof), (256, 256, 163840), {}),
          ("p2_kernel", gen_k2("p2", prof), (256, 256, 147456), {}),
          ("fin_kernel", gen_k3("fin"), (576, 256, 0), dict(vgpr=128, accum=128))]
    hdr = "".join(f"; @launch kernel={n} grid=({g},1,1) block=({b},1,1) lds={l}\n" for n, _, (g, b, l), _ in ks)
    s = hdr + '.amdgcn_target "amdgcn-amd-amdhsa--gfx950"\n'
    for n, p, _, _ in ks:
        out, nn = check(p.L); print(n, "nops", nn, "lines", len(out))
        s += khead(n) + "\n".join(out) + "\n"
    for n, p, _, kw in ks: s += kd(n, **kw)
    open(path, "w").write(s)
if __name__ == "__main__":
    build("v1.s"); build("v1_prof.s", True)
```

```python
import sys
sys.path.insert(0, "gen")
from asmlib import *
XNF_OFF = 0; HF_OFF = 0x400000; OF_OFF = 0x1800000; PART_OFF = 0x3000000; FLAGS_OFF = 0x7000000
PART_SZ = 2359296
LOG2E = 0x3fb8aa3b; LN2 = 0x3f317218
G1_BASE = 65536; G1_SLOT = 17408; G1_NS = 5
FLAG_LDS = 163824; LNB = 160768

def srd(p, d, lo, nrec, add=None):
    for x in srd_items(d, lo, nrec, add): p.put(x)
def atom(items):
    def f(pp):
        for x in items: pp.put(x)
    f.cost = len(items)
    return f
def srd_items(d, lo, nrec, add=None, w3=True):
    out = [f"s_mov_b32 s{d}, s{lo}", f"s_mov_b32 s{d+1}, s{lo+1}"] if add is None else [atom([f"s_add_u32 s{d}, s{lo}, {add}", f"s_addc_u32 s{d+1}, s{lo+1}, 0"])]
    out.append(f"s_mov_b32 s{d+2}, {nrec}")
    if w3: out.append(f"s_mov_b32 s{d+3}, 0x20000")
    return out

def gen(prof=None, opt=None):
    o = dict(pfh=True, pfo=True, TL=8, TLg=5, g_end=23, g_rd=2, hst_iters=5, o_dl=10, f2=9, f3=15)
    o.update(opt or {})
    p = Prog(); e = p.e
    nst = [0]
    def stamp(name):
        if prof and name in prof:
            e("s_memtime s[94:95]"); e("s_waitcnt lgkmcnt(0)"); e(f"v_writelane_b32 v0, s94, {nst[0]}"); p.lg = []; nst[0] += 1
    PX, PK, PV, PWQ, PWO, PW1, PW2, POUT, PDBG, PWS = 44, 46, 48, 50, 52, 56, 58, 60, 62, 64
    WQB = [1, 5]; W1B = [9, 10]; WQV = 11; W1V = 13; VL16 = 16; KV_ = 17; VV_ = 19; KB = 21; VBs = 25; VL8 = 33; ONES = 34
    FLN = 76; FST = 77; MHO = 78; MRED = 79
    AF = 48; RING = 6; DBG = 96
    FA = 112; SS = [192, 224]; PP = [160, 176]; NEGM = 144; QF = 80; HS = 144
    L = "v39"
    retry = []
    wtouch_setup = [f"v_mul_u32_u24 v44, 7282, {L}", "v_lshrrev_b32 v44, 16, v44", "v_mul_u32_u24 v47, 9, v44", f"v_sub_u32 v43, {L}, v47", "v_mul_u32_u24 v44, 9216, v44",
                    "v_lshlrev_b32 v43, 7, v43", "v_add_u32 v93, v43, v44", f"v_lshrrev_b32 v44, 3, {L}", "v_lshlrev_b32 v44, 13, v44", f"v_and_b32 v43, 7, {L}", "v_lshlrev_b32 v43, 7, v43", "v_add_u32 v94, v43, v44"]
    def wtouch(row0, nrows, idx):
        return ([f"s_mul_i32 s70, {idx}, {nrows}", f"s_add_u32 s70, s70, {row0}", "s_mul_i32 s71, s70, 9216", "s_mul_i32 s74, s7, 1152", "s_add_u32 s71, s71, s74"]
                + srd_items(72, PW1, (nrows - 1) * 9216 + 1152, "s71") + [("V", "buffer_load_dword v73, v93, s[72:75], 0 offen", None)]
                + ["s_lshl_b32 s71, s70, 13", "s_lshl_b32 s74, s7, 10", "s_add_u32 s71, s71, s74"]
                + srd_items(72, PWQ, (nrows - 1) * 8192 + 1024, "s71", w3=False) + [("V", "buffer_load_dword v73, v94, s[72:75], 0 offen", None)])
    e("s_cmp_ge_u32 s2, 256"); e("s_cbranch_scc1 L_end")
    e("s_load_dwordx16 s[44:59], s[0:1], 0"); e("s_load_dwordx4 s[60:63], s[0:1], 64"); e("s_load_dwordx2 s[64:65], s[0:1], 80")
    e("v_lshrrev_b32 v38, 6, v0"); e("v_and_b32 v39, 63, v0"); e("v_readfirstlane_b32 s3, v38")
    stamp("start")
    e(f"v_and_b32 v40, 7, {L}"); e("s_lshl_b32 s6, s2, 3"); e("v_add_u32 v42, s6, v40"); e("v_mul_u32_u24 v42, 1152, v42")
    e(f"v_lshrrev_b32 v41, 3, {L}"); e("v_lshlrev_b32 v43, 4, v41"); e("v_add_u32 v42, v42, v43"); e("s_lshl_b32 s6, s3, 7"); e("v_add_u32 v42, s6, v42")
    e("s_mov_b32 s10, 2359296"); e("s_mov_b32 s11, 0x20000")
    e("s_waitcnt lgkmcnt(0)")
    e(f"s_mov_b32 s8, s{PX}"); e(f"s_mov_b32 s9, s{PX+1}")
    srd(p, DBG, PDBG, 256)
    e("v_mov_b32 v45, 0")
    e("s_lshr_b32 s6, s2, 3"); e("s_and_b32 s7, s2, 7")
    e("s_cmp_lg_u32 s3, 3"); e("s_cbranch_scc1 L_ln")
    e("s_cmp_lg_u32 s2, 0"); e("s_cbranch_scc1 L_warm")
    e("s_memrealtime s[70:71]"); e("s_waitcnt lgkmcnt(0)"); e("s_or_b32 s70, s70, 1"); e("v_mov_b32 v44, s70")
    e("s_mov_b64 exec, 1"); e(f"buffer_store_dword v44, v45, s[{DBG}:{DBG+3}], 0 offen sc1"); e("s_mov_b64 exec, -1"); e("s_branch L_warm")
    p.label("L_ln")
    for i in range(3): e(f"buffer_load_dwordx4 v[{80+4*i}:{83+4*i}], v42, s[8:11], 0 offen offset:{384*i}")
    p.vm = ["x"]
    stamp("pf")
    p.wait(vm={"x"})
    stamp("xarr")
    for i in range(12): e(f"v_lshlrev_b32 v{112+2*i}, 16, v{80+i}"); e(f"v_and_b32 v{113+2*i}, 0xffff0000, v{80+i}")
    e("v_add_f32 v42, v112, v113"); e("v_mul_f32 v43, v112, v112"); e("v_add_f32 v44, v114, v115"); e("v_mul_f32 v45, v113, v113")
    e("v_fmac_f32 v43, v114, v114"); e("v_fmac_f32 v45, v115, v115")
    for i in range(4, 24): e(f"v_add_f32 v{42+2*(i%2)}, v{42+2*(i%2)}, v{112+i}"); e(f"v_fmac_f32 v{43+2*(i%2)}, v{112+i}, v{112+i}")
    e("v_add_f32 v42, v42, v44"); e("v_add_f32 v43, v43, v45")
    for r_ in (42, 43): e(f"v_add_f32_dpp v{r_}, v{r_}, v{r_} row_ror:8 row_mask:0xf bank_mask:0xf")
    for sw in ("v_permlane16_swap_b32", "v_permlane32_swap_b32"):
        e("v_mov_b32 v44, v42"); e("v_mov_b32 v45, v43"); e(f"{sw} v42, v44"); e(f"{sw} v43, v45"); e("v_add_f32 v42, v42, v44"); e("v_add_f32 v43, v43, v45")
    e(f"v_lshlrev_b32 v46, 5, v40"); e(f"v_add_u32 v46, {LNB}, v46"); e("s_lshl_b32 s70, s3, 3"); e("v_add_u32 v47, s70, v46")
    p.lds("ds_write_b64 v47, v[42:43]")
    e("s_lshr_b32 s70, s2, 3"); e("s_mul_i32 s70, s70, 18"); e("s_lshl_b32 s71, s3, 1"); e("s_add_u32 s70, s70, s71"); e("s_lshl_b32 s70, s70, 12")
    e("s_bfe_u32 s71, s2, 0x20001"); e("s_lshl_b32 s71, s71, 10"); e("s_add_u32 s70, s70, s71"); e("s_and_b32 s71, s2, 1"); e("s_lshl_b32 s71, s71, 7"); e("s_add_u32 s70, s70, s71")
    e(f"v_lshrrev_b32 v38, 5, {L}"); e("v_lshlrev_b32 v38, 12, v38"); e("v_and_b32 v41, 3, v41"); e("v_lshlrev_b32 v41, 8, v41"); e("v_add_u32 v38, v38, v41")
    e("v_lshlrev_b32 v41, 4, v40"); e("v_add_u32 v38, v38, v41"); e("v_add_u32 v38, s70, v38")
    srd(p, 16, PWS, 2359296)
    p.waitall(vm=False); e("s_barrier")
    p.lds("ds_read_b128 v[144:147], v46"); p.lds("ds_read_b64 v[148:149], v46 offset:16")
    e("s_mov_b32 s70, 0x3ae38e39")
    p.waitall(vm=False)
    e("v_add_f32 v144, v144, v146"); e("v_add_f32 v145, v145, v147")
    e("v_add_f32 v144, v144, v148"); e("v_add_f32 v145, v145, v149")
    e("v_mul_f32 v47, s70, v144"); e("v_mul_f32 v45, s70, v145"); e("v_fma_f32 v45, -v47, v47, v45"); e("v_max_f32 v45, 0, v45")
    def rb(v): e(f"v_cvt_pk_bf16_f32 v{v}, v{v}, v{v}"); e(f"v_lshlrev_b32 v{v}, 16, v{v}")
    rb(45); rb(47); e("v_add_f32 v45, 0x3727c5ac, v45"); rb(45); e("v_sqrt_f32 v45, v45"); rb(45)
    e("v_rcp_f32 v45, v45"); e(f"v_mul_f32 v45, {LOG2E:#x}, v45"); e("v_mul_f32 v47, v47, v45")
    for i in range(24): e(f"v_fma_f32 v{112+i}, v{112+i}, v45, -v47")
    for i in range(12): e(f"v_cvt_pk_bf16_f32 v{80+i}, v{112+2*i}, v{113+2*i}")
    e("v_mov_b32 v44, 0"); p.vmem(f"buffer_load_dword v74, v44, s[{DBG}:{DBG+3}], 0 offen sc1")
    e("s_mov_b32 s70, 24576"); e("s_mov_b32 s71, 49152")
    p.vmem("buffer_store_dwordx4 v[80:83], v38, s[16:19], 0 offen sc1", "lnst"); p.vmem("buffer_store_dwordx4 v[84:87], v38, s[16:19], s70 offen sc1", "lnst")
    p.vmem("buffer_store_dwordx4 v[88:91], v38, s[16:19], s71 offen sc1", "lnst")
    p.label("L_ln_done")
    stamp("lnc")
    e("s_and_b32 s4, s2, 7"); e("s_lshl_b32 s4, s4, 2"); e("s_bfe_u32 s5, s2, 0x20003"); e("s_add_u32 s4, s4, s5")
    e("s_lshr_b32 s5, s2, 5"); e("s_lshl_b32 s5, s5, 2"); e("s_add_u32 s5, s5, s3")
    e(f"v_lshrrev_b32 v40, 4, {L}"); e(f"v_and_b32 v45, 15, {L}")
    e("s_mul_i32 s70, s3, 144"); e("s_and_b32 s43, s4, 1"); e("s_lshl_b32 s71, s43, 1")
    for i in range(3):
        e(f"s_add_u32 s36, s70, {64*i}"); e(f"v_add_u32 v41, s36, {L}")
        e("v_mul_u32_u24 v46, 3641, v41"); e("v_lshrrev_b32 v46, 16, v46"); e("v_mul_u32_u24 v47, 18, v46"); e("v_sub_u32 v41, v41, v47")
        e("v_add_u32 v41, s71, v41"); e("v_subrev_u32 v47, 18, v41"); e("v_min_u32 v41, v41, v47"); e("v_lshlrev_b32 v41, 4, v41")
        e("v_bfe_u32 v47, v46, 2, 2"); e("v_lshlrev_b32 v47, 3, v47"); e("v_and_b32 v72, 3, v46"); e("v_add_u32 v47, v47, v72")
        e("v_lshrrev_b32 v46, 4, v46"); e("v_lshlrev_b32 v46, 2, v46"); e("v_add_u32 v47, v47, v46"); e("v_mul_u32_u24 v47, 9216, v47")
        e(f"v_add_u32 v{W1V+i}, v47, v41")
        if i: e(f"v_subrev_u32 v{W1V+i}, {1024*i}, v{W1V+i}")
    e("s_and_b32 s36, s3, 1"); e("s_lshr_b32 s37, s3, 1")
    for a in range(2):
        e(f"s_lshl_b32 s70, s36, 4"); e(f"s_lshl_b32 s71, s37, 2"); e("s_add_u32 s70, s70, s71"); e(f"s_add_u32 s70, s70, {8*a}")
        e("v_add_u32 v46, s70, v40"); e("v_lshlrev_b32 v46, 13, v46")
        e(f"v_lshlrev_b32 v47, 1, v40"); e(f"v_xor_b32 v47, {8*a}, v47"); e("v_xor_b32 v47, v47, v45"); e("v_lshlrev_b32 v47, 4, v47")
        e(f"v_add_u32 v{WQV+a}, v46, v47")
        if a: e(f"v_subrev_u32 v{WQV+a}, 1024, v{WQV+a}")
        e("s_lshl_b32 s70, s3, 11"); e("v_lshlrev_b32 v46, 8, v40"); e("v_add_u32 v46, s70, v46"); e(f"v_add_u32 v{VV_+a}, v46, v47")
        e("s_lshl_b32 s71, s36, 3"); e(f"s_add_u32 s71, s71, {4*a}"); e("v_add_u32 v47, s71, v40"); e("v_xor_b32 v47, v47, v45"); e("v_lshlrev_b32 v47, 4, v47")
        e(f"v_add_u32 v{KV_+a}, v46, v47")
    e("s_lshl_b32 s70, s4, 8"); e("s_sub_u32 s71, 4718592, s70"); srd(p, 8, PWQ, "s71", add="s70")
    e("s_mul_i32 s70, s4, 288"); e("s_sub_u32 s71, 5308416, s70"); srd(p, 12, PW1, "s71", add="s70")
    e("s_mov_b32 s36, 0"); e("s_mov_b32 s37, 0"); e("s_mov_b32 s38, 0")
    e("s_lshl_b32 s42, s3, 11"); e(f"s_add_u32 s40, s42, {G1_BASE}"); e("s_mul_i32 s41, s3, 2304"); e(f"s_add_u32 s41, s41, {G1_BASE+8192}")
    e(f"v_mov_b32 v{FST}, 0x100000"); e("s_lshl_b32 s70, s2, 10"); e("v_mov_b32 v46, s70"); e("s_lshl_b32 s71, s3, 6"); e(f"v_add_u32 v47, s71, {L}"); e("v_cmp_eq_u32 vcc, 0, v47"); e(f"v_cndmask_b32 v{FST}, v{FST}, v46, vcc")
    e("s_and_b32 s70, s2, 0xe0"); e(f"v_and_b32 v45, 31, {L}"); e("v_add_u32 v45, s70, v45"); e(f"v_lshlrev_b32 v{FLN}, 10, v45")
    e("s_mov_b32 s55, 0"); e("s_mov_b32 s54, 0x100000")
    def w_dma(ks):
        sl = (ks % G1_NS) * G1_SLOT; tok = ("W", ks)
        masked = atom(["s_mov_b64 exec, 0xffff", ("V", f"buffer_load_dwordx4 v{W1V+2}, s[12:15], s37 offen offset:2048 lds", tok), "s_mov_b64 exec, -1"])
        return [f"s_add_u32 m0, s41, {sl}",
                ("V", f"buffer_load_dwordx4 v{W1V}, s[12:15], s37 offen lds", tok),
                ("V", f"buffer_load_dwordx4 v{W1V+1}, s[12:15], s37 offen offset:1024 lds", tok),
                masked, "s_add_u32 s37, s37, 294912",
                f"s_add_u32 m0, s40, {sl}",
                ("V", f"buffer_load_dwordx4 v{WQV}, s[8:11], s36 offen lds", tok),
                ("V", f"buffer_load_dwordx4 v{WQV+1}, s[8:11], s36 offen offset:1024 lds", tok),
                "s_add_u32 s36, s36, 262144"]
    e("s_cmp_eq_u32 s3, 3"); e("s_cbranch_scc1 L_skip_lnw")
    p.wait(vm={"lnst"})
    e("v_readfirstlane_b32 s100, v74"); e("s_cmp_eq_u32 s100, 0"); e("s_cbranch_scc1 L_nonce_retry")
    p.label("L_nonce_ok")
    e(f"v_mov_b32 v45, {FLAG_LDS+4}"); e("ds_write_b32 v45, v74"); e("s_waitcnt lgkmcnt(0)")
    p.label("L_skip_lnw")
    srd(p, DBG, PWS, 262144, add=FLAGS_OFF)
    e("s_barrier")
    e(f"v_mov_b32 v45, {FLAG_LDS+4}"); p.lds("ds_read_b32 v47, v45", "nl")
    stamp("lnst")
    def publish(val):
        return atom(["v_mov_b32 v75, s100", ("V", f"buffer_store_dword v75, v{FST}, s[{DBG}:{DBG+3}], 0 offen offset:{128*val} sc1", None)])
    def poll_issue(tok, val, areg): return ("V", f"buffer_load_dword v74, v{areg}, s[{DBG}:{DBG+3}], 0 offen offset:{128*val} sc1", tok)
    def poll_check(tok, val, areg):
        k = len(retry); retry.append((val, areg))
        def f(pp):
            pp.wait(vm={tok}); pp.e("v_cmp_eq_u32 vcc, s100, v74"); pp.e("s_cmp_eq_u64 vcc, -1"); pp.e(f"s_cbranch_scc0 L_retry{k}"); pp.label(f"L_back{k}")
        f.cost = 4
        return f
    p.put(publish(1))
    for ks in range(4):
        for x in w_dma(ks): p.put(x)
    e(f"v_lshlrev_b32 v72, 7, {L}")
    p.wait(lg={"nl"}); e("v_readfirstlane_b32 s100, v47")
    e(f"v_bfe_u32 v41, {L}, 2, 2"); e(f"v_and_b32 v42, 3, {L}"); e(f"v_bfe_u32 v43, {L}, 2, 3"); e(f"v_lshrrev_b32 v44, 2, {L}")
    e(f"v_lshlrev_b32 v{VL16}, 4, {L}")
    e("v_lshrrev_b32 v45, 1, v42"); e("v_xor_b32 v45, v45, v43"); e("v_lshlrev_b32 v45, 5, v45"); e("v_lshlrev_b32 v46, 8, v44"); e("v_add_u32 v45, v45, v46")
    e("v_and_b32 v46, 1, v42"); e("v_lshlrev_b32 v46, 4, v46"); e("v_add_u32 v45, v45, v46")
    for u in range(4):
        e(f"v_xor_b32 v46, {64*u}, v45"); e(f"v_add_u32 v{WQB[0]+u}, {G1_BASE}, v46"); e(f"v_add_u32 v{WQB[1]+u}, {G1_BASE+3*G1_SLOT}, v46")
    e("v_mul_u32_u24 v45, 288, v44"); e("v_lshlrev_b32 v46, 3, v42"); e("v_add_u32 v45, v45, v46")
    e(f"v_add_u32 v{W1B[0]}, {G1_BASE+8192}, v45"); e(f"v_add_u32 v{W1B[1]}, {G1_BASE+3*G1_SLOT+8192}, v45")
    e("s_mul_i32 s70, s5, 73728"); srd(p, 16, PWS, 73728, add="s70")
    p.put(poll_issue("f1", 1, FLN))
    late = []
    late += ["v_lshlrev_b32 v45, 5, v43", "v_lshlrev_b32 v46, 8, v44", "v_add_u32 v45, v45, v46", "v_lshlrev_b32 v46, 3, v42", "v_add_u32 v45, v45, v46", "v_add_u32 v45, 8192, v45"]
    late += [f"v_xor_b32 v{VBs+t}, {32*t}, v45" for t in range(8)]
    late += [f"v_and_b32 v45, 15, {L}", "v_xor_b32 v46, v40, v45", "v_lshlrev_b32 v46, 4, v46", "v_lshlrev_b32 v45, 8, v45", "v_add_u32 v45, v45, v46"]
    late += [f"v_xor_b32 v{KB+s}, {64*s}, v45" for s in range(4)]
    late += ["s_lshl_b32 s70, s43, 9", f"v_lshrrev_b32 v{VL8}, 1, v{VL16}", f"v_add_u32 v{VL8}, s70, v{VL8}"]
    late += [f"v_mov_b32 v{ONES+i}, 0x3f803f80" for i in range(4)]
    late += ["s_lshr_b32 s70, s4, 1", "s_lshl_b32 s70, s70, 19", "s_add_u32 s70, s70, 393216"] + srd_items(20, PK, 131072, "s70") + srd_items(24, PV, 131072, "s70")
    late += ["s_mul_i32 s70, s5, 144", "s_lshr_b32 s71, s4, 1", "s_mul_i32 s71, s71, 9", "s_add_u32 s70, s70, s71", "s_lshl_b32 s70, s70, 12", f"s_add_u32 s70, s70, {HF_OFF}"] + srd_items(28, PWS, 36864, "s70")
    late += ["s_lshl_b32 s70, s5, 7", "s_lshl_b32 s71, s4, 2", "s_add_u32 s70, s70, s71", "s_lshl_b32 s70, s70, 12", f"s_add_u32 s70, s70, {OF_OFF}"] + srd_items(32, PWS, 16384, "s70")
    late += ["s_lshl_b32 s70, s5, 7", "s_lshl_b32 s71, s7, 4", "s_add_u32 s70, s70, s71", "s_lshl_b32 s70, s70, 12", f"s_add_u32 s70, s70, {OF_OFF}"] + srd_items(76, PWS, 65536, "s70")
    late += ["s_mul_i32 s66, s43, 20480", "s_add_u32 s67, s66, 4096", "s_add_u32 s68, s66, 8192", "s_add_u32 s69, s66, 12288", "s_mov_b32 s101, 16384"]
    late += ["s_and_b32 s70, s2, 0xe7", f"v_and_b32 v45, 3, {L}", "v_lshlrev_b32 v45, 3, v45", "v_add_u32 v45, s70, v45", f"v_lshlrev_b32 v{MHO}, 10, v45"]
    late += ["s_and_b32 s70, s2, 0xf8", f"v_and_b32 v45, 7, {L}", "v_add_u32 v45, s70, v45", f"v_lshlrev_b32 v{MRED}, 10, v45"]
    late += [f"v_mov_b32 v45, {FLAG_LDS}", "v_mov_b32 v46, 0", ("L", "ds_write_b32 v45, v46", None)]
    early = ["s_lshl_b32 s6, s6, 2", "s_add_u32 s6, s6, s3"] + [x.replace("v43", "v45").replace("v44", "v46") for x in wtouch_setup] + wtouch(320, 2, "s6")
    early += ["s_lshr_b32 s70, s6, 6", "s_lshl_b32 s71, s7, 1", "s_add_u32 s70, s70, s71", "s_lshl_b32 s70, s70, 19", "s_and_b32 s71, s6, 63", "s_lshl_b32 s71, s71, 11",
              "s_add_u32 s70, s70, s71", "s_add_u32 s70, s70, 393216"]
    early2 = srd_items(72, PK, 2048, "s70") + [("V", "buffer_load_dword v73, v72, s[72:75], 0 offen", None)]
    early3 = srd_items(72, PV, 2048, "s70") + [("V", "buffer_load_dword v73, v72, s[72:75], 0 offen", None)]
    late += ["s_mul_i32 s92, s6, 43", "s_lshr_b32 s92, s92, 9", "s_mul_i32 s92, s92, 12", "s_sub_u32 s92, s6, s92",
             "s_mul_i32 s70, s7, 663552", "s_mul_i32 s71, s6, 5184", "s_add_u32 s70, s70, s71", atom([f"s_add_u32 s72, s{PW2}, s70", f"s_addc_u32 s73, s{PW2+1}, 0"]), "s_mov_b32 s75, 0x20000",
             "s_mul_i32 s70, s7, 589824", "s_mul_i32 s71, s6, 4608", "s_add_u32 s70, s70, s71", atom([f"s_add_u32 s88, s{PWO}, s70", f"s_addc_u32 s89, s{PWO+1}, 0"]), "s_mov_b32 s91, 0x20000"]
    def late2(step):
        return [atom([f"s_cmp_eq_u32 s92, {step}", "s_cselect_b32 s74, 5184, 0", "s_cselect_b32 s90, 4608, 0"]),
                ("V", "buffer_load_dword v73, v72, s[72:75], 0 offen", None), ("V", "buffer_load_dword v73, v72, s[88:91], 0 offen", None)]
    p.put(poll_check("f1", 1, FLN))
    stamp("f1")
    def b_ld(ks):
        return [("V", f"buffer_load_dwordx4 a[{128+16*(ks%4)+4*rh}:{131+16*(ks%4)+4*rh}], v{VL16}, s[16:19], s38 offen offset:{1024*rh} sc1", ("B", ks)) for rh in range(4)] + ["s_add_u32 s38, s38, 4096"]
    def kv_dma(which, b):
        sl = (b % 4) * 16384 + (8192 if which == "V" else 0); vo, srd_ = (VV_, 24) if which == "V" else (KV_, 20)
        return [f"s_add_u32 m0, s42, {sl}", f"s_mov_b32 s39, {8192*b}",
                ("V", f"buffer_load_dwordx4 v{vo}, s[{srd_}:{srd_+3}], s39 offen lds", (which, b)),
                ("V", f"buffer_load_dwordx4 v{vo+1}, s[{srd_}:{srd_+3}], s39 offen offset:1024 lds", (which, b))]
    for ks in range(3):
        for x in b_ld(ks): p.put(x)
    e("s_barrier")
    fr = [(ks, t) for ks in range(18) for t in range(17)]
    DIST = 4
    def rd(f, half):
        ks, t = fr[f]; sl = ks % G1_NS; win = sl // 3; off = (sl % 3) * G1_SLOT
        r = AF + 4 * (f % RING) + 2 * half
        if t < 9: return ("L", f"ds_read_b64_tr_b16 v[{r}:{r+1}], v{W1B[win]} offset:{off + 32*t + 4608*half}", ("A", f))
        u, T = divmod(t - 9, 2)
        return ("L", f"ds_read_b64_tr_b16 v[{r}:{r+1}], v{WQB[win]+u} offset:{off + 8*T + 4096*half}", ("A", f))
    for f in range(DIST): p.put(rd(f, 0)); p.put(rd(f, 1))
    mf = []
    for f, (ks, t) in enumerate(fr):
        a = AF + 4 * (f % RING)
        for rh in range(4):
            d = f"v[{FA+16*t+4*rh}:{FA+16*t+4*rh+3}]" if t < 9 else f"a[{16*(t-9)+4*rh}:{16*(t-9)+4*rh+3}]"
            b = 128 + 16 * (ks % 4) + 4 * rh
            m = dict(text=f"v_mfma_f32_16x16x32_bf16 {d}, v[{a}:{a+3}], a[{b}:{b+3}], {'0' if ks == 0 else d}")
            if rh == 0:
                if f % 2 == 0: m["lg"] = {("A", f), ("A", f + 1)}
                if t == 0: m["vm"] = {("B", ks)}
            mf.append(m)
    qr = Q(); qv = Q(); qx = Q()
    for f in range(DIST, len(fr)):
        g0 = 4 * (f - DIST); qr.add(rd(f, 0), g0 - 4, g0 + 1); qr.add(rd(f, 1), g0 - 4, g0 + 2)
    for x in early: qx.add(x, 0, 60)
    for x in early2: qx.add(x, 68 + 50, 68 + 66)
    for x in early3: qx.add(x, 136 + 50, 136 + 66)
    for x in late: qx.add(x, 0, 68 * 5 + 50)
    for k in range(12):
        for x in late2(k): qx.add(x, 68 * (5 + k) + 58, 68 * (5 + k) + 66)
    kvpre = {14: [("K", 0), ("K", 1)], 15: [("V", 0), ("K", 2)], 16: [("V", 1), ("K", 3)]}
    for ks in range(18):
        g0 = 68 * ks
        if 0 < ks < 17: qv.add(("B", {("W", ks + 1)}), g0 - 1, g0 - 1)
        if prof and f"k{ks}" in prof: qv.add((lambda nm: lambda pp: stamp(nm))(f"k{ks}"), g0, g0)
        items = []
        if ks + 3 < 18: items += b_ld(ks + 3)
        if ks + 4 < 18: items += w_dma(ks + 4)
        for w, b in kvpre.get(ks, []): items += kv_dma(w, b)
        for k, x in enumerate(items): qv.add(x, g0 + 1 + 4 * k, g0 + 3 + 4 * k)
    st = []
    schedule(p, mf, [qr, qv, qx], stats=st)
    stamp("g1")
    e("s_nop 7")
    hst = []
    def silu8(regs, dst):
        n = len(regs); tt = [38 + i for i in range(n)]
        for i in range(n): e(f"v_exp_f32_e64 v{tt[i]}, -v{regs[i]}")
        for i in range(n): e(f"v_add_f32 v{tt[i]}, 1.0, v{tt[i]}")
        for i in range(n): e(f"v_rcp_f32 v{tt[i]}, v{tt[i]}")
        for i in range(n): e(f"v_mul_f32 v{regs[i]}, v{regs[i]}, v{tt[i]}")
        for i in range(n // 2): e(f"v_cvt_pk_bf16_f32 v{tt[i]}, v{regs[2*i]}, v{regs[2*i+1]}")
        for i in range(n // 2): e(f"v_accvgpr_write_b32 a{dst+i}, v{tt[i]}")
    for pr in range(4):
        for rh in range(4):
            dst = HS + 16 * pr + 4 * rh
            silu8([FA + 32 * pr + 4 * rh + i for i in range(4)] + [FA + 32 * pr + 16 + 4 * rh + i for i in range(4)], dst)
            hst.append(("V", f"buffer_store_dwordx4 a[{dst}:{dst+3}], v{VL16}, s[28:31], s{66+pr} offen offset:{1024*rh} sc1", "hst"))
    for rp in range(2):
        dst = HS + 64 + 4 * rp
        silu8([FA + 128 + 8 * rp + i for i in range(8)], dst)
        for k in range(2): hst.append(("V", f"buffer_store_dwordx2 a[{dst+2*k}:{dst+2*k+1}], v{VL8}, s[28:31], s101 offen offset:{1024*(2*rp+k)} sc1", "hst"))
    stamp("silu")
    e("s_mov_b32 s70, 0x3db504f3")
    for u in range(4):
        for rh in range(4):
            src = [16 * (2 * u + T) + 4 * rh + i for T in range(2) for i in range(4)]
            for i in range(8): e(f"v_accvgpr_read_b32 v{38+i}, a{src[i]}")
            for i in range(8): e(f"v_mul_f32 v{38+i}, s70, v{38+i}")
            for i in range(4): e(f"v_cvt_pk_bf16_f32 v{QF+16*u+4*rh+i}, v{38+2*i}, v{39+2*i}")
    VOFF = 1; VRD = [10, 11, 12]
    e(f"v_lshrrev_b32 v39, 4, v{VL16}"); e(f"v_lshrrev_b32 v13, 1, v{VL16}")
    for i in range(9):
        e(f"v_add_u32 v45, {64*i}, v39"); e("v_mul_u32_u24 v46, 3641, v45"); e("v_lshrrev_b32 v46, 16, v46")
        e("v_mul_u32_u24 v47, 18, v46"); e("v_sub_u32 v47, v45, v47"); e("v_mul_u32_u24 v46, 1152, v46"); e("v_lshlrev_b32 v47, 4, v47")
        e(f"v_add_u32 v{VOFF+i}, v46, v47")
        if i % 4: e(f"v_subrev_u32 v{VOFF+i}, {1024*(i%4)}, v{VOFF+i}")
    e("v_lshrrev_b32 v45, 2, v39"); e(f"v_mul_u32_u24 v{VRD[0]}, 288, v45"); e("v_and_b32 v45, 3, v39"); e("v_lshlrev_b32 v45, 3, v45"); e(f"v_add_u32 v{VRD[0]}, v{VRD[0]}, v45")
    e(f"v_add_u32 v{VRD[1]}, 65536, v{VRD[0]}"); e(f"v_add_u32 v{VRD[2]}, {65536+55296}, v{VRD[0]}")
    e("s_bfe_u32 s6, s2, 0x20003"); e("s_mul_i32 s43, s6, 288")
    e("s_mul_i32 s70, s7, 663552"); e("s_add_u32 s70, s70, s43"); e("s_sub_u32 s71, 663552, s43"); srd(p, 8, PW2, "s71", add="s70")
    e("s_mul_i32 s70, s7, 589824"); e("s_add_u32 s70, s70, s43"); e("s_sub_u32 s71, 589824, s43"); srd(p, 12, PWO, "s71", add="s70")
    e("s_mul_i32 s70, s5, 144"); e("s_mul_i32 s71, s7, 18"); e("s_add_u32 s70, s70, s71"); e("s_lshl_b32 s70, s70, 12"); e(f"s_add_u32 s70, s70, {HF_OFF}")
    srd(p, 16, PWS, 73728, add="s70")
    e("s_mul_i32 s36, s3, 36864"); e("s_mov_b32 s38, 0")
    e("s_mul_i32 s40, s3, 9216")
    e(f"s_add_u32 s41, s40, {65536+8*9216}"); e(f"s_add_u32 s70, s40, {2*9216}"); e("s_cmp_lt_u32 s3, 2"); e("s_cselect_b32 s41, s41, s70")
    def slotpos(j):
        g, w = (j // 4) % 4, j % 4
        if g == 0: return 65536 + 9216 * w
        if g == 1: return 65536 + 9216 * (4 + w)
        if g == 2: return 9216 * w
        return 65536 + 9216 * (8 + w) if w < 2 else 9216 * (2 + w)
    def a_dma(n):
        g = n % 4; out = []
        S = 8 if n < 5 else 12
        if n == 4:
            out += ["s_sub_u32 s37, s36, 663552", atom(["s_cmp_lt_u32 s3, 2", "s_cselect_b32 s8, s8, s12", "s_cselect_b32 s9, s9, s13"]),
                    atom(["s_cmp_lt_u32 s3, 2", "s_cselect_b32 s10, s10, s14", "s_cselect_b32 s36, s36, s37"])]
        for i in range(9):
            if i % 4 == 0:
                out.append(f"s_add_u32 m0, s41, {1024*i}" if g == 3 else f"s_add_u32 m0, s40, {slotpos(4*g) + 1024*i}")
            out.append(("V", f"buffer_load_dwordx4 v{VOFF+i}, s[{S}:{S+3}], s36 offen offset:{1024*(i%4)} lds", ("A2", n)))
        out.append("s_add_u32 s36, s37, 147456" if n == 4 else "s_add_u32 s36, s36, 147456")
        return out
    NK2 = 34; TL = o["TL"]; TAIL0 = NK2 - TL
    NV = max(0, TL - 5)
    def breg(j, rh):
        if j >= NK2 - NV:
            s = j - (NK2 - NV); return "v", FA + 32 * s + 16 * (rh // 2) + 8 + 4 * (rh % 2)
        return "a", 160 + 16 * (j % 6) + 4 * rh
    def b2_ld(j):
        out = []; S = 16 if j < 18 else 76
        so = f"s_mov_b32 s38, {4096 * (j if j < 18 else j - 18)}"
        out.append(so)
        for rh in range(4):
            k, b = breg(j, rh)
            if j in (4, 13): out += [("V", f"buffer_load_dwordx2 {k}[{b+2*h}:{b+2*h+1}], v13, s[16:19], s38 offen offset:{1024*rh+512*h} sc1", ("B2", j)) for h in range(2)]
            else: out.append(("V", f"buffer_load_dwordx4 {k}[{b}:{b+3}], v{VL16}, s[{S}:{S+3}], s38 offen offset:{1024*rh} sc1", ("B2", j)))
        return out
    e("v_lshrrev_b32 v45, 3, v39"); e("v_lshlrev_b32 v45, 12, v45"); e("v_and_b32 v46, 7, v39"); e("v_lshlrev_b32 v46, 7, v46"); e("v_add_u32 v45, v45, v46")
    e("s_lshl_b32 s70, s6, 10"); e("v_add_u32 v72, s70, v45")
    def l2_touch(S, k0):
        return [atom([f"s_mov_b32 s71, {4096*k0}", "s_mov_b32 exec_hi, 0", ("V", f"buffer_load_dword v73, v72, s[{S}:{S+3}], s71 offen sc1", None), "s_mov_b32 exec_hi, -1"])]
    stamp("qep")
    def kfr(b): return [("K", b, T, s) for T in range(2) for s in range(4)]
    def vfr(b): return [("V", b, t) for t in range(8)]
    def areads(x, slot):
        r = AF + 4 * slot; sl = (x[1] % 4) * 16384
        if x[0] == "K": return [("L", f"ds_read_b128 v[{r}:{r+3}], v{KB+x[3]} offset:{sl + 4096*x[2]}", x)]
        return [("L", f"ds_read_b64_tr_b16 v[{r+2*h}:{r+2*h+1}], v{VBs+x[2]} offset:{sl + 4096*h}", x) for h in range(2)]
    def amf(x, slot, czero=False):
        a = AF + 4 * slot; out = []
        for rh in range(4):
            if x[0] == "K":
                _, b, T, s = x; d = SS[b % 2] + 16 * T + 4 * rh; q = QF + 16 * s + 4 * rh
                c = (("0" if czero else f"v[{NEGM+4*rh}:{NEGM+4*rh+3}]") if s == 0 else f"v[{d}:{d+3}]")
                out.append(f"v_mfma_f32_16x16x32_bf16 v[{d}:{d+3}], v[{a}:{a+3}], v[{q}:{q+3}], {c}")
            else:
                _, b, t = x; d = 16 * t + 4 * rh; pb = PP[b % 2] + 4 * rh
                out.append(f"v_mfma_f32_16x16x32_bf16 a[{d}:{d+3}], v[{a}:{a+3}], v[{pb}:{pb+3}], {'0' if b == 0 else f'a[{d}:{d+3}]'}")
        return out
    def rowmax(dst, srcs):
        e(f"v_max3_f32 v{dst}, v{srcs[0]}, v{srcs[1]}, v{srcs[2]}")
        k = 3
        while k + 1 < len(srcs): e(f"v_max3_f32 v{dst}, v{dst}, v{srcs[k]}, v{srcs[k+1]}"); k += 2
        if k < len(srcs): e(f"v_max_f32 v{dst}, v{dst}, v{srcs[k]}")
    def xmax_negm():
        for sw in ("v_permlane32_swap_b32", "v_permlane16_swap_b32"):
            for rh in range(4): e(f"v_mov_b32 v{42+rh}, v{38+rh}")
            for rh in range(4): e(f"{sw} v{38+rh}, v{42+rh}")
            for rh in range(4): e(f"v_max_f32 v{38+rh}, v{38+rh}, v{42+rh}")
        for rh in range(4):
            for i in range(4): e(f"v_sub_f32 v{NEGM+4*rh+i}, 0, v{38+rh}")
    def attention(first_pass):
        p.wait(vm={("K", 1), ("V", 0)}); e("s_barrier")
        seq = kfr(0)
        for i, x in enumerate(seq[:RING]):
            for it in areads(x, i): p.put(it)
        for i, x in enumerate(seq):
            p.wait(lg={x})
            for k, t in enumerate(amf(x, i % RING, czero=True)):
                e(t)
                if first_pass and k == 1 and i < 4: p.put(hst.pop(0))
            if i + RING < 8:
                for it in areads(seq[i + RING], i % RING): p.put(it)
        seq = kfr(1)
        for i in range(1, 15): seq += vfr(i - 1) + kfr(i + 1)
        seq += vfr(14) + vfr(15)
        S0 = 8 % RING; DISTA = 4
        for i in range(DISTA):
            for it in areads(seq[i], (S0 + i) % RING): p.put(it)
        if first_pass:
            e("s_nop 4")
            for rh in range(4): rowmax(38 + rh, [SS[0] + 16 * T + 4 * rh + i for T in range(2) for i in range(4)])
            xmax_negm()
        else: e("s_nop 7")
        mf = []; first = {}; lastm = {}
        for i, x in enumerate(seq):
            key = (x[0], x[1]); first.setdefault(key, len(mf))
            for rh, t in enumerate(amf(x, (S0 + i) % RING)):
                m = dict(text=t)
                if rh == 0 and i % 2 == 0: m["lg"] = {x} | ({seq[i + 1]} if i + 1 < len(seq) else set())
                mf.append(m)
            lastm[x] = len(mf) - 1
            if x[0] == "V" and x[2] == 3:
                for rh in range(4):
                    pb = PP[x[1] % 2] + 4 * rh; d = 128 + 4 * rh
                    mf.append(dict(text=f"v_mfma_f32_16x16x32_bf16 a[{d}:{d+3}], v[{ONES}:{ONES+3}], v[{pb}:{pb+3}], {'0' if x[1] == 0 else f'a[{d}:{d+3}]'}"))
        fstart = {i: lastm[x] - 3 for i, x in enumerate(seq)}
        qr = Q(); qv = Q(); qx = Q()
        for i in range(DISTA, len(seq)):
            lo = lastm[seq[i - RING]] if i >= RING else -1
            lo = max(lo, fstart[i - DISTA] - 3)
            for k, it in enumerate(areads(seq[i], (S0 + i) % RING)): qr.add(it, lo, fstart[i - DISTA] + 2 + k)
        for b in range(16):
            s = SS[b % 2]; dl = first[("V", b)] - 2
            for T in range(2):
                lo = -1 if b == 0 else lastm[("K", b, T, 3)] + 3
                lo_p = lastm[("V", b - 2, 7)] if b >= 2 else -1
                for rh in range(4):
                    rs = [s + 16 * T + 4 * rh + i for i in range(4)]
                    if b == 0:
                        for r_ in rs: qx.add(f"v_add_f32 v{r_}, v{r_}, v{NEGM+4*rh}", lo, dl)
                    for r_ in rs: qx.add(f"v_exp_f32 v{r_}, v{r_}", lo + rh, dl)
                    if rh > 0 or T > 0:
                        for it in pend: qx.add(it, max(lo, lo_p), dl)
                    pend = [f"v_cvt_pk_bf16_f32 v{PP[b%2]+4*rh+2*T+k}, v{rs[2*k]}, v{rs[2*k+1]}" for k in range(2)]
            for it in pend: qx.add(it, -1, dl)
        HI = o["hst_iters"]
        for i in range(0, 16):
            g0 = (first[("V", i - 1)] if i > 0 else 0) - 1
            need = set()
            if i + 1 < 16: need.add(("K", i + 1))
            need.add(("V", i))
            if first_pass and i == HI + 1: need.add("hst")
            qv.add(("B", need), g0, g0)
            if first_pass and prof and f"a{i}" in prof: qv.add((lambda nm: lambda pp: stamp(nm))(f"a{i}"), g0, g0)
            items = []
            if first_pass and i == HI + 1: items.append(publish(2))
            if i + 2 < 16: items += kv_dma("V", i + 2)
            if first_pass and i < HI:
                for _ in range(-(-len(hst) // (HI - i))): items.append(hst.pop(0))
            if i + 4 < 16: items += kv_dma("K", i + 4)
            if first_pass:
                if i == o["f2"] - 1: items.append(poll_issue("f2", 2, MHO))
                if i == o["f2"]: items += [poll_check("f2", 2, MHO)]
                if o["pfh"] and o["f2"] <= i < o["f2"] + 5: items += l2_touch(16, 4 * (i - o["f2"]))
                if i == 12: items += a_dma(0)
                if i == 13: items += a_dma(1)
                if i == 14: items += b2_ld(0) + b2_ld(1)
                if i == 15: items += b2_ld(2) + b2_ld(3)
            sp = 3 if len(items) > 11 else 5
            for k, x in enumerate(items): qv.add(x, g0 + 2 + (sp - 1) * k, min(g0 + 8 + sp * k, len(mf) - 2))
        schedule(p, mf, [qr, qv, qx], stats=st)
    attention(True)
    p.label("L_attn_done")
    stamp("attn")
    e("s_nop 7")
    for rh in range(4): e(f"v_accvgpr_read_b32 v{40+rh}, a{128+4*rh}")
    e("s_mov_b32 s70, 0x4e800000")
    e("v_add_f32 v38, v40, v41"); e("v_add_f32 v39, v42, v43"); e("v_add_f32 v38, v38, v39")
    e("v_cmp_ngt_f32 vcc, s70, v38"); e(f"v_mov_b32 v45, {FLAG_LDS}"); e("v_mov_b32 v46, 1")
    e("s_cmp_eq_u64 vcc, 0"); e("s_cbranch_scc1 L_novote")
    e("ds_write_b32 v45, v46"); e("s_waitcnt lgkmcnt(0)")
    p.label("L_novote")
    p.wait(vm={("A2", 1)}); e("s_barrier")
    p.lds("ds_read_b32 v46, v45", "vote")
    GT0 = 18 - o["TLg"]
    fr2 = ([(j, t) for j in range(GT0) for t in range(9)] + [(j, t) for t in range(9) for j in range(GT0, 18)]
           + [(j, t) for j in range(18, TAIL0) for t in range(9)] + [(j, t) for t in range(9) for j in range(TAIL0, NK2)])
    def rd2(f, half):
        j, t = fr2[f]; pos = slotpos(j); win = 0 if pos < 65536 else (1 if pos < 65536 + 55296 else 2)
        base = [0, 65536, 65536 + 55296][win]
        r = AF + 4 * (f % RING) + 2 * half
        return ("L", f"ds_read_b64_tr_b16 v[{r}:{r+1}], v{VRD[win]} offset:{pos - base + 32*t + 4608*half}", ("A", f))
    for f in range(DIST): p.put(rd2(f, 0)); p.put(rd2(f, 1))
    for rh in range(4): e(f"v_rcp_f32 v{40+rh}, v{40+rh}")
    p.wait(lg={"vote"}); e("v_readfirstlane_b32 s70, v46"); e("s_xor_b32 s71, s55, 1"); e("s_and_b32 s70, s70, s71"); e("s_cbranch_scc1 L_fallback")
    drop = o.get("drop", ())
    if drop:
        orig = p.vmem
        def vm2(txt, tok=None):
            key = tok[0] if isinstance(tok, tuple) else tok
            if key in drop: p.e("s_nop 0")
            else: orig(txt, tok)
        p.vmem = vm2
    mf = []; lastf = {}
    for f, (j, t) in enumerate(fr2):
        a = AF + 4 * (f % RING)
        for rh in range(4):
            k, b = breg(j, rh)
            d = f"v[{FA+16*t+4*rh}:{FA+16*t+4*rh+3}]" if j < 18 else f"a[{16*t+4*rh}:{16*t+4*rh+3}]"
            m = dict(text=f"v_mfma_f32_16x16x32_bf16 {d}, v[{a}:{a+3}], {k}[{b}:{b+3}], {'0' if j in (0, 18) else d}")
            if rh == 0:
                if f % 2 == 0: m["lg"] = {("A", f), ("A", f + 1)}
                if t == 0: m["vm"] = {("B2", j)}
            mf.append(m)
        lastf[(j, t)] = len(mf) - 1
    qr = Q(); qv = Q(); qx = Q(); qs = Q()
    for f in range(DIST, len(fr2)):
        g0 = 4 * (f - DIST); qr.add(rd2(f, 0), g0 - 4, g0 + 1); qr.add(rd2(f, 1), g0 - 4, g0 + 2)
    nq = 0; ODL = o["o_dl"]
    for u in range(4):
        for rh in range(4):
            dl = (36 * ODL * (4 * u + rh + 1)) // 16
            if rh == 0: qx.add(f"s_mov_b32 s39, {4096*u}", -1, dl)
            src = [16 * (2 * u + T) + 4 * rh + i for T in range(2) for i in range(4)]
            dst = 96 + 4 * (nq % 2); tt = 80 + 8 * (nq % 2); nq += 1
            for i in range(8): qx.add(f"v_accvgpr_read_b32 v{tt+i}, a{src[i]}", -1, dl)
            for i in range(8): qx.add(f"v_mul_f32 v{tt+i}, v{tt+i}, v{40+rh}", -1, dl)
            for i in range(4): qx.add(f"v_cvt_pk_bf16_f32 v{dst+i}, v{tt+2*i}, v{tt+2*i+1}", -1, dl)
            qx.add(("V", f"buffer_store_dwordx4 v[{dst}:{dst+3}], v{VL16}, s[32:35], s39 offen offset:{1024*rh} sc1", "ost"), -1, dl)
    g18 = 36 * 18
    psetup = ["s_lshr_b32 s70, s2, 3", "s_lshl_b32 s70, s70, 2", "s_add_u32 s70, s70, s3", "s_mul_i32 s70, s70, 18432", f"s_mul_i32 s66, s7, {PART_SZ}",
              "s_add_u32 s70, s70, s66", f"s_add_u32 s70, s70, {PART_OFF}"] + srd_items(28, PWS, 8 * PART_SZ + 18432, "s70", w3=False)
    rset = [f"v_lshrrev_b32 v39, 4, v{VL16}", "s_mul_i32 s70, s3, 144", "s_lshl_b32 s66, s7, 5", "s_lshr_b32 s67, s2, 5", "s_lshl_b32 s67, s67, 8", "s_add_u32 s67, s67, s66",
            "s_mul_i32 s67, s67, 1152", "s_add_u32 s67, s67, s43"]
    for i in range(3):
        rset += [f"s_add_u32 s66, s70, {64*i}", "v_add_u32 v45, s66, v39", f"v_lshlrev_b32 v{80+i}, 4, v45",
                 "v_lshrrev_b32 v46, 6, v45", "v_lshlrev_b32 v46, 5, v46", "v_bfe_u32 v47, v45, 4, 2", "v_lshlrev_b32 v47, 3, v47", "v_add_u32 v46, v46, v47",
                 "v_and_b32 v47, 15, v45", "v_mul_u32_u24 v47, 1152, v47", "v_add_u32 v46, v46, v47", f"v_add_u32 v{83+i}, s67, v46"]
    rset += ["s_and_b32 s70, s2, 0xf8", "s_add_u32 s70, s70, s7", "s_mul_i32 s70, s70, 9216", f"s_add_u32 s70, s70, {PART_OFF}"] + srd_items(32, PWS, 15 * PART_SZ + 9216, "s70", w3=False)
    rset += srd_items(20, PX, 2359296, w3=False) + srd_items(24, POUT, 2359296, w3=False)
    for x in psetup + rset: qx.add(x, 36 * ODL, 36 * GT0 + 20)
    gs0 = lastf[(17, 0)] + 16; span = 36 * o["g_end"] - gs0
    for t in range(9):
        lo = lastf[(17, t)] + 4
        for i in range(8): qx.add(f"v_cvt_pk_bf16_f32 v{FA+16*t+i}, v{FA+16*t+2*i}, v{FA+16*t+2*i+1}", lo, lo + 10)
        for pr in range(2):
            l2 = max(lo + 12, gs0 + (span * (2 * t + pr)) // 18)
            qs.add(atom([f"s_mov_b32 s39, {8*PART_SZ + 9216*pr + 1024*t}", ("V", f"buffer_store_dwordx4 v[{FA+16*t+4*pr}:{FA+16*t+4*pr+3}], v{VL16}, s[28:31], s39 offen sc1", "gst")]), l2, l2 + 6)
    gq = [FA + 16 * t + 4 * h for t in range(9) for h in range(2)] + [FA + 16 * t + 8 + 4 * h for t in range(2 * NV, 9) for h in range(2)]
    assert len(gq) >= 24
    def red_ld(pi, quads, tok):
        return [f"s_mov_b32 s39, {pi*PART_SZ}", ("V", f"buffer_load_dwordx4 v[{quads[0]}:{quads[0]+3}], v80, s[32:35], s39 offen sc1", tok),
                ("V", f"buffer_load_dwordx4 v[{quads[1]}:{quads[1]+3}], v81, s[32:35], s39 offen sc1", tok),
                atom(["s_mov_b64 exec, 0xffff", ("V", f"buffer_load_dwordx4 v[{quads[2]}:{quads[2]+3}], v82, s[32:35], s39 offen sc1", tok), "s_mov_b64 exec, -1"])]
    gr0 = 36 * (TAIL0 + o["g_rd"])
    qs.add(poll_issue("f4", 4, MRED), gr0 - 30, gr0 - 24); qs.add(poll_check("f4", 4, MRED), gr0, gr0 + 4)
    k = 0; stp = (len(mf) - 8 - gr0) // 34
    for pi in range(8):
        for x in red_ld(8 + pi, gq[3 * pi:3 * pi + 3], ("gl", pi)): qs.add(x, gr0 + 4 + stp * k, gr0 + 8 + stp * k); k += 1
    for t in range(9):
        lo = lastf[(NK2 - 1, t)] + 4; hi = lo + 4 * TL - 4
        for pr in range(2):
            dst = 96 + 4 * (nq % 2); nq += 1; tt = 104
            for i in range(8): qx.add(f"v_accvgpr_read_b32 v{tt+i}, a{16*t+8*pr+i}", lo, hi)
            for i in range(4): qx.add(f"v_cvt_pk_bf16_f32 v{dst+i}, v{tt+2*i}, v{tt+2*i+1}", lo, hi)
            qx.add(f"s_mov_b32 s68, {9216*pr + 1024*t}", lo, hi)
            qx.add(("V", f"buffer_store_dwordx4 v[{dst}:{dst+3}], v{VL16}, s[28:31], s68 offen sc1", "sst"), lo, hi)
    JO = ((ODL + 4) // 4) * 4
    extra = list(range(NK2 - NV, NK2))
    for j in range(TAIL0 + 1):
        g0 = 36 * j; items = []
        if (j % 4 == 0 and j > 0 and j != 16) or j == TAIL0 or j == 18:
            need = {("A2", j // 4 + 1)}
            if j == JO: need.add("ost")
            if j == TAIL0: need.add(("A2", 8))
            if j == 24: need.add("gst")
            if j == 12: need.add(("A2", 4))
            qv.add(("B", need), g0 - 1, g0 - 1)
            if j == JO: items.append(publish(3))
            if j == 24: items.append(publish(4))
        if prof and f"j{j}" in prof: qv.add((lambda nm: lambda pp: stamp(nm))(f"j{j}"), g0, g0)
        if j == TAIL0: break
        if j == o["f3"] - 1: items.append(poll_issue("f3", 3, MHO))
        if j == o["f3"]: items += [poll_check("f3", 3, MHO)]
        if o["pfo"] and o["f3"] <= j < o["f3"] + 4: items += l2_touch(76, 4 * (j - o["f3"]))
        if j < GT0 - 1 or j >= 18:
            if j + 4 < NK2 - NV and not (j >= 18 and j + 4 <= 22): items += b2_ld(j + 4)
        if j == GT0 - 1:
            for m_ in range(j + 4, 18): items += b2_ld(m_)
        if j == o["f3"]: items += b2_ld(18)
        if j == 18: items = b2_ld(19) + b2_ld(20) + items
        if j == 19: items = b2_ld(21) + b2_ld(22) + items
        if j == TAIL0 - 1:
            for m_ in range(j + 5, NK2 - NV): items += b2_ld(m_)
        if j >= 20 and extra: items += b2_ld(extra.pop(0))
        sp = 2 if len(items) <= 16 else 1
        for k, x in enumerate(items): qv.add(x, g0 + 1 + sp * k, g0 + 6 + sp * k)
    assert not extra
    qa = Q()
    for n in range(2, 9):
        g0, step = {2: (2, 7), 3: (92, 7), 4: (184, 8), 7: (36 * 18 + 2, 5)}.get(n, (144 * (n - 3) + 2, 10))
        for k, x in enumerate(a_dma(n)): qa.add(x, g0 + step * k, g0 + step * k + 5)
    schedule(p, mf, [qr, qv, qx, qs, qa], stats=st)
    stamp("p2")
    p.wait(vm={"sst"}); e("s_barrier")
    p.put(publish(5))
    stamp("sst")
    e("s_mov_b32 s68, 18432")
    for i in range(2):
        p.vmem(f"buffer_load_dwordx2 v[{48+4*i}:{49+4*i}], v{83+i}, s[20:23], 0 offen", "xl"); p.vmem(f"buffer_load_dwordx2 v[{50+4*i}:{51+4*i}], v{83+i}, s[20:23], s68 offen", "xl")
    e("s_mov_b64 exec, 0xffff"); p.vmem("buffer_load_dwordx2 v[56:57], v85, s[20:23], 0 offen", "xl"); p.vmem("buffer_load_dwordx2 v[58:59], v85, s[20:23], s68 offen", "xl"); e("s_mov_b64 exec, -1")
    G = 12; Sg = 86; T_ = 38; sq = [FA + 4 * i for i in range(24)]
    def accum(dst, quads, n, tok):
        for pi in range(n):
            p.wait(vm={(tok, pi)})
            for j in range(12):
                src = quads[3 * pi + j // 4] + j % 4
                if pi == 0: e(f"v_lshlrev_b32 v{dst+2*j}, 16, v{src}"); e(f"v_and_b32 v{dst+2*j+1}, 0xffff0000, v{src}")
                else:
                    e(f"v_lshlrev_b32 v{T_+2*(j%2)}, 16, v{src}"); e(f"v_and_b32 v{T_+1+2*(j%2)}, 0xffff0000, v{src}")
                    e(f"v_add_f32 v{dst+2*j}, v{dst+2*j}, v{T_+2*(j%2)}"); e(f"v_add_f32 v{dst+2*j+1}, v{dst+2*j+1}, v{T_+1+2*(j%2)}")
    accum(G, gq, 8, "gl")
    p.put(poll_issue("f5", 5, MRED))
    for j in range(24): e(f"v_exp_f32_e64 v{Sg+j}, -v{G+j}")
    for j in range(24): e(f"v_add_f32 v{Sg+j}, 1.0, v{Sg+j}")
    for j in range(24): e(f"v_rcp_f32 v{Sg+j}, v{Sg+j}")
    for j in range(24): e(f"v_mul_f32 v{G+j}, {LN2:#x}, v{G+j}")
    for j in range(24): e(f"v_mul_f32 v{G+j}, v{G+j}, v{Sg+j}")
    p.put(poll_check("f5", 5, MRED))
    stamp("f5")
    for pi in range(8):
        for x in red_ld(pi, sq[3 * pi:3 * pi + 3], ("sl", pi)): p.put(x)
    accum(Sg, sq, 8, "sl")
    for j in range(12):
        e(f"v_lshlrev_b32 v{T_}, 16, v{48+j}"); e(f"v_and_b32 v{T_+1}, 0xffff0000, v{48+j}")
        e(f"v_fmac_f32 v{T_}, v{Sg+2*j}, v{G+2*j}"); e(f"v_fmac_f32 v{T_+1}, v{Sg+2*j+1}, v{G+2*j+1}")
        e(f"v_cvt_pk_bf16_f32 v{48+j}, v{T_}, v{T_+1}")
    for i in range(2):
        p.vmem(f"buffer_store_dwordx2 v[{48+4*i}:{49+4*i}], v{83+i}, s[24:27], 0 offen"); p.vmem(f"buffer_store_dwordx2 v[{50+4*i}:{51+4*i}], v{83+i}, s[24:27], s68 offen")
    e("s_mov_b64 exec, 0xffff"); p.vmem("buffer_store_dwordx2 v[56:57], v85, s[24:27], 0 offen"); p.vmem("buffer_store_dwordx2 v[58:59], v85, s[24:27], s68 offen")
    if prof:
        p.waitall(); stamp("end")
        e("s_memrealtime s[94:95]"); e("s_waitcnt lgkmcnt(0)")
        srd(p, 72, PWS, 0x100000, add=0x8000000)
        e("s_lshl_b32 s70, s2, 2"); e("s_add_u32 s70, s70, s3"); e("s_lshl_b32 s70, s70, 6"); e("v_mov_b32 v4, s70"); e("s_mov_b64 exec, 1")
        for i in range(nst[0]): e(f"v_readlane_b32 s70, v0, {i}"); e("s_nop 1"); e(f"v_mov_b32 v5, s70"); e(f"buffer_store_dword v5, v4, s[72:75], 0 offen offset:{4*i}")
        e(f"v_mov_b32 v5, {nst[0]}"); e("buffer_store_dword v5, v4, s[72:75], 0 offen offset:56")
        e("v_mov_b32 v5, s94"); e("buffer_store_dword v5, v4, s[72:75], 0 offen offset:60")
    p.label("L_end"); e("s_endpgm")
    p.label("L_code_end")
    p.label("L_warm")
    e("s_getpc_b64 s[70:71]"); p.label("L_pc"); e(f"s_sub_u32 s72, s70, L_pc-{NAME}_kernel"); e("s_subb_u32 s73, s71, 0"); e("s_mov_b32 s74, CODE_BYTES"); e("s_mov_b32 s75, 0x20000")
    e("s_lshl_b32 s70, s6, 12"); e(f"v_lshlrev_b32 v46, 7, {L}")
    e("s_mov_b32 exec_hi, 0"); e("buffer_load_dword v73, v46, s[72:75], s70 offen"); e("s_mov_b32 exec_hi, -1")
    for x in wtouch_setup: e(x)
    for x in wtouch(0, 4, "s6"): p.put(x)
    e("s_barrier")
    for x in wtouch(128, 6, "s6"): p.put(x)
    e("s_branch L_ln_done")
    p.label("L_nonce_retry")
    e("s_sleep 1"); e("v_mov_b32 v45, 0"); e(f"buffer_load_dword v74, v45, s[{DBG}:{DBG+3}], 0 offen sc1"); e("s_waitcnt vmcnt(0)")
    e("v_readfirstlane_b32 s100, v74"); e("s_sub_u32 s54, s54, 1"); e("s_cbranch_scc1 L_nonce_ok"); e("s_cmp_eq_u32 s100, 0"); e("s_cbranch_scc1 L_nonce_retry"); e("s_branch L_nonce_ok")
    for k, (val, areg) in enumerate(retry):
        p.label(f"L_retry{k}")
        e("s_sleep 1"); e(f"buffer_load_dword v74, v{areg}, s[{DBG}:{DBG+3}], 0 offen offset:{128*val} sc1"); e("s_waitcnt vmcnt(0)")
        e("s_sub_u32 s54, s54, 1"); e(f"s_cbranch_scc1 L_back{k}")
        e("v_cmp_eq_u32 vcc, s100, v74"); e("s_cmp_eq_u64 vcc, -1"); e(f"s_cbranch_scc0 L_retry{k}"); e(f"s_branch L_back{k}")
    p.label("L_fallback")
    p.waitall(); e("s_mov_b32 s55, 1")
    for rh in range(4): e(f"v_mov_b32 v{38+rh}, 0xff800000")
    e("s_mov_b32 s39, 0")
    p.label("L_maxloop")
    e("s_barrier"); e("s_mov_b32 m0, s42"); e("s_nop 0")
    e(f"buffer_load_dwordx4 v{KV_}, s[20:23], s39 offen lds"); e(f"buffer_load_dwordx4 v{KV_+1}, s[20:23], s39 offen offset:1024 lds")
    e("s_waitcnt vmcnt(0)"); e("s_barrier")
    for i, x in enumerate(kfr(0)):
        p.put(areads(x, i % RING)[0]); p.waitall(vm=False)
        for t in amf(x, i % RING, czero=True): e(t)
    e("s_nop 7")
    for rh in range(4): rowmax(42, [SS[0] + 16 * T + 4 * rh + i for T in range(2) for i in range(4)]); e(f"v_max_f32 v{38+rh}, v{38+rh}, v42")
    e("s_add_u32 s39, s39, 8192"); e("s_cmp_lt_u32 s39, 131072"); e("s_cbranch_scc1 L_maxloop")
    xmax_negm()
    e("s_barrier")
    for w, b in [("K", 0), ("K", 1), ("V", 0), ("K", 2), ("V", 1), ("K", 3)]:
        for x in kv_dma(w, b): p.put(x)
    attention(False)
    p.waitall(); e("s_branch L_attn_done")
    print("sched", st)
    return p

def build(path, prof=None, opt=None):
    KN = NAME + "_kernel"
    p = gen(prof, opt)
    out, nn = check(p.L); print(path, "nops", nn, "lines", len(out))
    s = ("; @launch grid=(256,1,1) block=(256,1,1) lds=163840\n" + '.amdgcn_target "amdgcn-amd-amdhsa--gfx950"\n'
         + f".set CODE_BYTES, L_code_end - {KN}\n" + khead(KN) + "\n".join(out) + "\n" + kd(KN))
    open(path, "w").write(s)
PA = ["start", "pf", "xarr", "lnc", "lnst", "f1", "g1", "silu", "qep", "attn", "p2", "sst", "f5", "end"]
PB = ["attn", "j2", "j4", "j8", "j12", "j15", "j18", "j20", "j24", "j26", "p2", "sst", "f5", "end"]
PC = ["f1", "k0", "k1", "k3", "k6", "k9", "k12", "k15", "g1", "qep", "a0", "a3", "a6", "a9"]
PD = ["qep", "a0", "a2", "a4", "a6", "a8", "a10", "a11", "a12", "a13", "a14", "a15", "attn", "j2"]
if __name__ == "__main__":
    build("m2.s"); build("m2_pa.s", PA); build("m2_pb.s", PB); build("m2_pc.s", PC); build("m2_pd.s", PD)
    for k, d in dict(a=("ost",), b=("B2",), c=("A2",), d=("ost", "gst", "sst"), e=("ost", "gst", "sst", "B2", "A2")).items(): build(f"m2_x{k}.s", PB, dict(drop=d))
```

```python
import re
NAME = "recurrent_scan__sliding_block_cached__dense_activation_silu__prompt"

def vr(base, n=1, kind="v"):
    return f"{kind}[{base}:{base+n-1}]" if n > 1 else f"{kind}{base}"

class R:
    def __init__(s, kind, base, n=1): s.k, s.b, s.n = kind, base, n
    def __str__(s): return vr(s.b, s.n, s.k)
    def sub(s, off, n=1): assert off + n <= s.n; return R(s.k, s.b + off, n)

_REG = re.compile(r"^(-|\|)?(?:abs\()?([vas])(?:\[(\d+):(\d+)\]|(\d+))\)?\|?$")
def regs_of(tok):
    tok = tok.strip()
    if tok in ("vcc", "exec", "m0", "scc"): return {tok}
    if tok in ("vcc_lo", "vcc_hi"): return {"vcc"}
    if tok in ("exec_lo", "exec_hi"): return {"exec"}
    m = _REG.match(tok)
    if not m: return set()
    k = m.group(2)
    if m.group(3) is not None: return {(k, i) for i in range(int(m.group(3)), int(m.group(4)) + 1)}
    return {(k, int(m.group(5)))}

TRANS = ("v_exp_f32", "v_rcp_f32", "v_rsq_f32", "v_sqrt_f32", "v_log_f32")
def parse(text):
    t = text.split(";")[0].strip()
    op, _, rest = t.partition(" ")
    ops = [o.strip() for o in re.split(r",(?![^\[]*\])", rest)] if rest else []
    mods = []
    if ops:
        last = ops[-1].split()
        if last: ops[-1] = last[0]; mods = last[1:]
    RS = lambda l: set().union(*[regs_of(o) for o in l]) if l else set()
    if op.startswith("v_mfma"): return op, "mfma", regs_of(ops[0]), RS(ops[1:]) | {"exec"}
    if op.startswith("ds_read") or op.startswith("ds_bpermute") or op.startswith("ds_swizzle"): return op, "lds_rd", regs_of(ops[0]), RS(ops[1:])
    if op.startswith("ds_write"): return op, "lds_wr", set(), RS(ops)
    if op.startswith("buffer_load"):
        if "lds" in mods: return op, "dma", set(), RS(ops) | {"m0"}
        return op, "vm_ld", regs_of(ops[0]), RS(ops[1:])
    if op.startswith("buffer_store"): return op, "vm_st", set(), RS(ops)
    if op.startswith("buffer_atomic"):
        return op, ("vm_ld" if "sc0" in mods else "vm_st"), (regs_of(ops[0]) if "sc0" in mods else set()), RS(ops)
    if op.startswith("buffer_"): return op, "other", set(), set()
    if op in ("s_waitcnt", "s_barrier", "s_nop", "s_endpgm", "s_setprio", "s_sleep") or op.startswith("s_cbranch") or op == "s_branch":
        return op, op if op in ("s_waitcnt", "s_barrier", "s_nop") else "other", set(), set()
    if op.startswith("s_load") or op in ("s_memtime", "s_memrealtime"): return op, "smem", regs_of(ops[0]), RS(ops[1:])
    if op.startswith("s_cmp"): return op, "salu", {"scc"}, RS(ops)
    if op.startswith("s_"):
        w = regs_of(ops[0])
        if "saveexec" in op: w |= {"exec"}
        return op, "salu", w | {"scc"}, RS(ops[1:])
    if op.startswith("v_"):
        base = op.replace("_e32", "").replace("_e64", "")
        kind = "trans" if base in TRANS else "valu"
        if base.startswith("v_permlane"): return op, "perm", RS(ops[:2]), RS(ops[:2])
        if base.startswith("v_cmp"): return op, kind, regs_of(ops[0]), RS(ops[1:])
        w = regs_of(ops[0]); r = RS(ops[1:])
        if "_co_" in base: w |= regs_of(ops[1]); r = RS(ops[2:])
        if base.startswith("v_fmac") or base.startswith("v_dot2c"): r |= w
        if base in ("v_readfirstlane_b32", "v_readlane_b32"): return op, "rdlane", w, r
        if base == "v_writelane_b32": return op, "valu", w, r
        if any(m.startswith(("row_", "quad_perm", "wave_")) for m in mods): kind = "dpp"
        return op, kind, w, r
    raise ValueError("cannot parse: " + text)

class Prog:
    def __init__(self):
        self.L = []; self.lg = []; self.vm = []
    def e(self, s): self.L.append("  " + s)
    def label(self, s): self.L.append(s + ":")
    def c(self, s): self.L.append("  ; " + s)
    def lds(self, s, tok=None): self.e(s); self.lg.append(tok)
    def vmem(self, s, tok=None): self.e(s); self.vm.append(tok)
    def _need(self, q, toks):
        idx = [i for i, t in enumerate(q) if t in toks]
        return None if not idx else len(q) - 1 - max(idx)
    def needs_wait(self, lg=(), vm=()):
        return self._need(self.lg, lg) is not None or self._need(self.vm, vm) is not None
    def wait(self, lg=(), vm=()):
        parts = []
        n = self._need(self.vm, vm)
        if n is not None:
            n = min(n, 63); parts.append(f"vmcnt({n})"); self.vm = self.vm[len(self.vm) - n:] if n else []
        n = self._need(self.lg, lg)
        if n is not None:
            n = min(n, 15); parts.append(f"lgkmcnt({n})"); self.lg = self.lg[len(self.lg) - n:] if n else []
        if parts: self.e("s_waitcnt " + " ".join(parts))
        return bool(parts)
    def waitall(self, lg=True, vm=True):
        self.e("s_waitcnt " + " ".join((["vmcnt(0)"] if vm else []) + (["lgkmcnt(0)"] if lg else [])))
        if vm: self.vm = []
        if lg: self.lg = []
    def put(self, it):
        if callable(it): it(self)
        elif isinstance(it, str): self.e(it)
        elif it[0] == "L": self.lds(it[1], it[2])
        elif it[0] == "V": self.vmem(it[1], it[2])
        elif it[0] == "W": self.wait(lg=it[1], vm=it[2])
        elif it[0] == "B": self.wait(vm=it[1]); self.e("s_barrier")
        else: raise ValueError(it)
    def text(self): return "\n".join(self.L) + "\n"

def cost_of(it):
    if callable(it): return getattr(it, 'cost', 1)
    if isinstance(it, str):
        op = it.split()[0]
        return 2 if op.replace("_e32", "").replace("_e64", "") in TRANS else 1
    if it[0] == "B": return 2
    if it[0] == "V": return 1
    return 1

class Q:
    def __init__(s, name=""): s.items = []; s.name = name; s.pos = 0
    def add(s, item, lo=-1, hi=10**9): s.items.append((lo, hi, item))

def schedule(p, mf, queues, budget=2, stats=None):
    n = len(mf)
    for q in queues:
        hi = 10**9; out = []
        for lo, h, it in reversed(q.items):
            hi = min(hi, h)
            assert lo <= max(hi, -1) or lo >= n, f"infeasible window lo={lo} hi={hi} for {it}"
            out.append((lo, hi, it))
        q.items = out[::-1]
    over = 0
    def fill(g, bud):
        used = 0
        while True:
            cands = [q for q in queues if q.pos < len(q.items) and q.items[q.pos][0] <= g]
            if not cands: break
            cands.sort(key=lambda q: q.items[q.pos][1])
            pick = None
            for q in cands:
                lo, hi, it = q.items[q.pos]
                if hi <= g or used + cost_of(it) <= bud or (used == 0 and cost_of(it) > budget and bud == budget): pick = q; break
            if pick is None: break
            it = pick.items[pick.pos][2]; pick.pos += 1
            p.put(it); used += cost_of(it)
        return used
    fill(-1, 10**6 if False else 0)
    for i, m in enumerate(mf):
        p.wait(lg=m.get("lg", ()), vm=m.get("vm", ()))
        p.e(m["text"])
        bud = budget
        if i + 1 < n and m.get("resv", True):
            nx = mf[i + 1]
            if nx.get("lg") or nx.get("vm"): bud -= 1
        u = fill(i, bud)
        res = budget - bud
        if u + res > budget: over += u + res - budget
    left = 0
    for q in queues: left += len(q.items) - q.pos
    fill(10**9, 10**6)
    if stats is not None: stats.append((n, over, left))

def check(lines, fix=True):
    out = []
    last = {}
    mfc = {}
    stw = {}
    pos = 0
    lgq = []; vmq = []
    nnop = 0
    for ln in lines:
        t = ln.strip()
        if t == "; @save": saved = (dict(last), dict(mfc), dict(stw), pos, list(lgq), list(vmq)); continue
        if t == "; @restore":
            last, mfc, stw, pos, lgq, vmq = dict(saved[0]), dict(saved[1]), dict(saved[2]), saved[3], list(saved[4]), list(saved[5]); continue
        if not t or t.startswith(";") or t.startswith(".") or t.endswith(":"):
            out.append(ln); continue
        op, kind, w, r = parse(t)
        if kind == "s_waitcnt":
            m = re.search(r"vmcnt\((\d+)\)", t)
            if m: n = int(m.group(1)); vmq = vmq[len(vmq) - n:] if n else []
            m = re.search(r"lgkmcnt\((\d+)\)", t)
            if m: n = int(m.group(1)); lgq = lgq[len(lgq) - n:] if n else []
        for q, nm in ((lgq, "lgkm"), (vmq, "vm")):
            for dst in q:
                if dst & (r | w) and not (kind in ("lds_rd", "vm_ld") and not (dst & r)):
                    raise AssertionError(f"use of un-waited {nm} load dest {sorted(dst & (r|w), key=str)[:2]} in: {t}")
        need = 0
        def req(regs, pred, ws):
            nonlocal need
            for x in regs:
                if x in last and pred(last[x][0]): need = max(need, ws - (pos - last[x][1] - 1))
        isv = lambda k: k in ("valu", "trans", "perm", "dpp", "rdlane", "dot")
        if kind == "mfma":
            ops = [o.strip() for o in re.split(r",(?![^\[]*\])", t.partition(" ")[2])]
            D, A, B, C = [regs_of(o.split()[0]) for o in ops[:4]]
            req(A | B | C, isv, 2)
            ws = 12 if "32x32" in op else 8
            req(A | B, lambda k: k.startswith("mfma"), ws)
            if C and C != D: req(C, lambda k: k.startswith("mfma"), ws)
            elif C:
                for x in C:
                    if x in last and last[x][0].startswith("mfma") and last[x][2] != (op, min(D)): need = max(need, ws - (pos - last[x][1] - 1))
            if C != D: req(D, lambda k: k.startswith("mfma"), ws)
            req({"exec"}, isv, 4)
        else:
            for x in (r | w):
                if x in last and last[x][0].startswith("mfma"):
                    ws = 12 if last[x][0] == "mfma32" else 8
                    need = max(need, ws - (pos - last[x][1] - 1))
            if isv(kind):
                for x in w:
                    if x in mfc: need = max(need, mfc[x][1] - (pos - mfc[x][0] - 1))
                    if x in stw: need = max(need, 2 - (pos - stw[x] - 1))
                if kind != "trans": req(r, lambda k: k == "trans", 1)
                if not op.startswith("v_dot"): req(r | w, lambda k: k == "dot", 3)
                else: req(r - w, lambda k: k == "dot", 3)
                req({x for x in r if x == "vcc" or (isinstance(x, tuple) and x[0] == "s")}, isv, 2)
            if kind in ("lds_rd", "vm_ld"):
                for x in w:
                    if x in stw: need = max(need, 1 - (pos - stw[x] - 1))
            if kind == "perm" or kind == "dpp": req({x for x in r if isinstance(x, tuple) and x[0] == "v"}, isv, 2)
            if kind == "rdlane": req(r, isv, 1)
            if kind in ("vm_ld", "vm_st", "dma"): req({x for x in r if isinstance(x, tuple) and x[0] == "s"}, isv, 5)
            if kind == "dma": req({"m0"}, lambda k: k == "salu", 1)
            if kind in ("lds_rd", "lds_wr", "vm_ld", "vm_st", "dma"): req(r, lambda k: k == "trans", 1)
        if need > 0:
            if not fix: raise AssertionError(f"hazard: need {need} more wait states before: {t}")
            out.append(f"  s_nop {need - 1}"); pos += need; nnop += 1
        out.append(ln)
        if kind == "s_nop": pos += int(t.split()[1]) + 1
        else: pos += 1
        p_ = pos - 1
        if kind == "mfma":
            k = "mfma32" if "32x32" in op else "mfma16"
            for x in w: last[x] = (k, p_, (op, min(w)))
            for x in C: mfc[x] = (p_, 7 if k == "mfma32" else 3)
        else:
            for x in w: last[x] = ("dot" if op.startswith("v_dot") else kind, p_, None)
        if kind == "vm_st" and ("x4" in op or "x3" in op):
            ops = [o.strip() for o in re.split(r",(?![^\[]*\])", t.partition(" ")[2])]
            for x in regs_of(ops[0]): stw[x] = p_
        if kind in ("lds_rd", "lds_wr", "smem"): lgq.append(set(w))
        if kind in ("vm_ld", "vm_st", "dma"): vmq.append(set(w))
    return out, nnop

def kd(name, vgpr=512, accum=256, sgpr=102):
    return "\n".join([
        '.section .rodata,"a"', ".p2align 6", f".amdhsa_kernel {name}",
        f"  .amdhsa_next_free_vgpr {vgpr}", f"  .amdhsa_next_free_sgpr {sgpr}", f"  .amdhsa_accum_offset {accum}",
        "  .amdhsa_group_segment_fixed_size 0", "  .amdhsa_kernarg_size 88", "  .amdhsa_user_sgpr_count 2",
        "  .amdhsa_user_sgpr_kernarg_segment_ptr 1", "  .amdhsa_system_sgpr_workgroup_id_x 1", ".end_amdhsa_kernel", ""])

def khead(name):
    return "\n".join([".text", f".globl {name}", ".p2align 8", f".type {name},@function", f"{name}:", ""])
```

```python
import sys
sys.path.insert(0, "gen")
from asmlib import *
XNF_OFF = 0; HF_OFF = 0x400000; OF_OFF = 0x1800000; PART_OFF = 0x3000000; FLAGS_OFF = 0x7000000
PART_SZ = 2359296
LOG2E = 0x3fb8aa3b; LN2 = 0x3f317218
G1_BASE = 65536; G1_SLOT = 17408; G1_NS = 5
FLAG_LDS = 163824; LNB = 160768

def srd(p, d, lo, nrec, add=None):
    for x in srd_items(d, lo, nrec, add): p.put(x)
def atom(items):
    def f(pp):
        for x in items: pp.put(x)
    f.cost = len(items)
    return f
def srd_items(d, lo, nrec, add=None, w3=True):
    out = [f"s_mov_b32 s{d}, s{lo}", f"s_mov_b32 s{d+1}, s{lo+1}"] if add is None else [atom([f"s_add_u32 s{d}, s{lo}, {add}", f"s_addc_u32 s{d+1}, s{lo+1}, 0"])]
    out.append(f"s_mov_b32 s{d+2}, {nrec}")
    if w3: out.append(f"s_mov_b32 s{d+3}, 0x20000")
    return out

def gen(prof=None, opt=None):
    o = dict(pfh=True, pfo=True, TL=6, hst_iters=5, f2=11, o_sp=13, o_pub=236, f3=284, a2=150, p_sp=11, pub4=62, chk4=85)
    o.update(opt or {})
    p = Prog(); e = p.e
    nst = [0]
    def stamp(name):
        if prof and name in prof:
            e("s_memrealtime s[94:95]" if o.get("rt") else "s_memtime s[94:95]"); e("s_waitcnt lgkmcnt(0)"); e(f"v_writelane_b32 v0, s94, {nst[0]}"); p.lg = []; nst[0] += 1
    PX, PK, PV, PWQ, PWO, PW1, PW2, POUT, PDBG, PWS = 44, 46, 48, 50, 52, 56, 58, 60, 62, 64
    WQB = [1, 5]; W1B = [9, 10]; WQV = 11; W1V = 13; VL16 = 16; KV_ = 17; VV_ = 19; KB = 21; VBs = 25; VL8 = 33; ONES = 34
    FLN = 76; FST = 77; MHO = 78; MRED = 79
    AF = 48; RING = 6; DBG = 96
    FA = 112; SS = [192, 224]; PP = [160, 176]; NEGM = 144; QF = 80; HS = 144
    L = "v39"
    retry = []
    wtouch_setup = [f"v_mul_u32_u24 v44, 7282, {L}", "v_lshrrev_b32 v44, 16, v44", "v_mul_u32_u24 v47, 9, v44", f"v_sub_u32 v43, {L}, v47", "v_mul_u32_u24 v44, 9216, v44",
                    "v_lshlrev_b32 v43, 7, v43", "v_add_u32 v93, v43, v44", f"v_lshrrev_b32 v44, 3, {L}", "v_lshlrev_b32 v44, 13, v44", f"v_and_b32 v43, 7, {L}", "v_lshlrev_b32 v43, 7, v43", "v_add_u32 v94, v43, v44"]
    def wtouch(row0, nrows, idx):
        return ([f"s_mul_i32 s70, {idx}, {nrows}", f"s_add_u32 s70, s70, {row0}", "s_mul_i32 s71, s70, 9216", "s_mul_i32 s74, s7, 1152", "s_add_u32 s71, s71, s74"]
                + srd_items(72, PW1, (nrows - 1) * 9216 + 1152, "s71") + [("V", "buffer_load_dword v73, v93, s[72:75], 0 offen", None)]
                + ["s_lshl_b32 s71, s70, 13", "s_lshl_b32 s74, s7, 10", "s_add_u32 s71, s71, s74"]
                + srd_items(72, PWQ, (nrows - 1) * 8192 + 1024, "s71", w3=False) + [("V", "buffer_load_dword v73, v94, s[72:75], 0 offen", None)])
    e("s_cmp_ge_u32 s2, 256"); e("s_cbranch_scc1 L_end")
    e("s_load_dwordx16 s[44:59], s[0:1], 0"); e("s_load_dwordx4 s[60:63], s[0:1], 64"); e("s_load_dwordx2 s[64:65], s[0:1], 80")
    e("v_lshrrev_b32 v38, 6, v0"); e("v_and_b32 v39, 63, v0"); e("v_readfirstlane_b32 s3, v38")
    stamp("start")
    e(f"v_and_b32 v40, 7, {L}"); e("s_lshl_b32 s6, s2, 3"); e("v_add_u32 v42, s6, v40"); e("v_mul_u32_u24 v42, 1152, v42")
    e(f"v_lshrrev_b32 v41, 3, {L}"); e("v_lshlrev_b32 v43, 4, v41"); e("v_add_u32 v42, v42, v43"); e("s_lshl_b32 s6, s3, 7"); e("v_add_u32 v42, s6, v42")
    e("s_mov_b32 s10, 2359296"); e("s_mov_b32 s11, 0x20000")
    e("s_waitcnt lgkmcnt(0)")
    e(f"s_mov_b32 s8, s{PX}"); e(f"s_mov_b32 s9, s{PX+1}")
    srd(p, DBG, PDBG, 256)
    e("v_mov_b32 v45, 0")
    e("s_lshr_b32 s6, s2, 3"); e("s_and_b32 s7, s2, 7")
    e("s_cmp_lg_u32 s3, 3"); e("s_cbranch_scc1 L_ln")
    e("s_cmp_lg_u32 s2, 0"); e("s_cbranch_scc1 L_warm")
    e("s_memrealtime s[70:71]"); e("s_waitcnt lgkmcnt(0)"); e("s_or_b32 s70, s70, 1"); e("v_mov_b32 v44, s70")
    e("s_mov_b64 exec, 1"); e(f"buffer_store_dword v44, v45, s[{DBG}:{DBG+3}], 0 offen sc1"); e("s_mov_b64 exec, -1"); e("s_branch L_warm")
    p.label("L_ln")
    for i in range(3): e(f"buffer_load_dwordx4 v[{80+4*i}:{83+4*i}], v42, s[8:11], 0 offen offset:{384*i}")
    p.vm = ["x"]
    stamp("pf")
    p.wait(vm={"x"})
    stamp("xarr")
    for i in range(12): e(f"v_lshlrev_b32 v{112+2*i}, 16, v{80+i}"); e(f"v_and_b32 v{113+2*i}, 0xffff0000, v{80+i}")
    e("v_add_f32 v42, v112, v113"); e("v_mul_f32 v43, v112, v112"); e("v_add_f32 v44, v114, v115"); e("v_mul_f32 v45, v113, v113")
    e("v_fmac_f32 v43, v114, v114"); e("v_fmac_f32 v45, v115, v115")
    for i in range(4, 24): e(f"v_add_f32 v{42+2*(i%2)}, v{42+2*(i%2)}, v{112+i}"); e(f"v_fmac_f32 v{43+2*(i%2)}, v{112+i}, v{112+i}")
    e("v_add_f32 v42, v42, v44"); e("v_add_f32 v43, v43, v45")
    for r_ in (42, 43): e(f"v_add_f32_dpp v{r_}, v{r_}, v{r_} row_ror:8 row_mask:0xf bank_mask:0xf")
    for sw in ("v_permlane16_swap_b32", "v_permlane32_swap_b32"):
        e("v_mov_b32 v44, v42"); e("v_mov_b32 v45, v43"); e(f"{sw} v42, v44"); e(f"{sw} v43, v45"); e("v_add_f32 v42, v42, v44"); e("v_add_f32 v43, v43, v45")
    e(f"v_lshlrev_b32 v46, 5, v40"); e(f"v_add_u32 v46, {LNB}, v46"); e("s_lshl_b32 s70, s3, 3"); e("v_add_u32 v47, s70, v46")
    p.lds("ds_write_b64 v47, v[42:43]")
    e("s_lshr_b32 s70, s2, 3"); e("s_mul_i32 s70, s70, 18"); e("s_lshl_b32 s71, s3, 1"); e("s_add_u32 s70, s70, s71"); e("s_lshl_b32 s70, s70, 12")
    e("s_bfe_u32 s71, s2, 0x20001"); e("s_lshl_b32 s71, s71, 10"); e("s_add_u32 s70, s70, s71"); e("s_and_b32 s71, s2, 1"); e("s_lshl_b32 s71, s71, 7"); e("s_add_u32 s70, s70, s71")
    e(f"v_lshrrev_b32 v38, 5, {L}"); e("v_lshlrev_b32 v38, 12, v38"); e("v_and_b32 v41, 3, v41"); e("v_lshlrev_b32 v41, 8, v41"); e("v_add_u32 v38, v38, v41")
    e("v_lshlrev_b32 v41, 4, v40"); e("v_add_u32 v38, v38, v41"); e("v_add_u32 v38, s70, v38")
    srd(p, 16, PWS, 2359296)
    p.waitall(vm=False); e("s_barrier")
    p.lds("ds_read_b128 v[144:147], v46"); p.lds("ds_read_b64 v[148:149], v46 offset:16")
    e("s_mov_b32 s70, 0x3ae38e39")
    p.waitall(vm=False)
    e("v_add_f32 v144, v144, v146"); e("v_add_f32 v145, v145, v147")
    e("v_add_f32 v144, v144, v148"); e("v_add_f32 v145, v145, v149")
    e("v_mul_f32 v47, s70, v144"); e("v_mul_f32 v45, s70, v145"); e("v_fma_f32 v45, -v47, v47, v45"); e("v_max_f32 v45, 0, v45")
    def rb(v): e(f"v_cvt_pk_bf16_f32 v{v}, v{v}, v{v}"); e(f"v_lshlrev_b32 v{v}, 16, v{v}")
    rb(45); rb(47); e("v_add_f32 v45, 0x3727c5ac, v45"); rb(45); e("v_sqrt_f32 v45, v45"); rb(45)
    e("v_rcp_f32 v45, v45"); e(f"v_mul_f32 v45, {LOG2E:#x}, v45"); e("v_mul_f32 v47, v47, v45")
    for i in range(24): e(f"v_fma_f32 v{112+i}, v{112+i}, v45, -v47")
    for i in range(12): e(f"v_cvt_pk_bf16_f32 v{80+i}, v{112+2*i}, v{113+2*i}")
    e("v_mov_b32 v44, 0"); p.vmem(f"buffer_load_dword v74, v44, s[{DBG}:{DBG+3}], 0 offen sc1")
    e("s_mov_b32 s70, 24576"); e("s_mov_b32 s71, 49152")
    p.vmem("buffer_store_dwordx4 v[80:83], v38, s[16:19], 0 offen sc1", "lnst"); p.vmem("buffer_store_dwordx4 v[84:87], v38, s[16:19], s70 offen sc1", "lnst")
    p.vmem("buffer_store_dwordx4 v[88:91], v38, s[16:19], s71 offen sc1", "lnst")
    p.label("L_ln_done")
    stamp("lnc")
    e("s_and_b32 s4, s2, 7"); e("s_lshl_b32 s4, s4, 2"); e("s_bfe_u32 s5, s2, 0x20003"); e("s_add_u32 s4, s4, s5")
    e("s_lshr_b32 s5, s2, 5"); e("s_lshl_b32 s5, s5, 2"); e("s_add_u32 s5, s5, s3")
    e(f"v_lshrrev_b32 v40, 4, {L}"); e(f"v_and_b32 v45, 15, {L}")
    e("s_mul_i32 s70, s3, 144"); e("s_and_b32 s43, s4, 1"); e("s_lshl_b32 s71, s43, 1")
    for i in range(3):
        e(f"s_add_u32 s36, s70, {64*i}"); e(f"v_add_u32 v41, s36, {L}")
        e("v_mul_u32_u24 v46, 3641, v41"); e("v_lshrrev_b32 v46, 16, v46"); e("v_mul_u32_u24 v47, 18, v46"); e("v_sub_u32 v41, v41, v47")
        e("v_add_u32 v41, s71, v41"); e("v_subrev_u32 v47, 18, v41"); e("v_min_u32 v41, v41, v47"); e("v_lshlrev_b32 v41, 4, v41")
        e("v_bfe_u32 v47, v46, 2, 2"); e("v_lshlrev_b32 v47, 3, v47"); e("v_and_b32 v72, 3, v46"); e("v_add_u32 v47, v47, v72")
        e("v_lshrrev_b32 v46, 4, v46"); e("v_lshlrev_b32 v46, 2, v46"); e("v_add_u32 v47, v47, v46"); e("v_mul_u32_u24 v47, 9216, v47")
        e(f"v_add_u32 v{W1V+i}, v47, v41")
        if i: e(f"v_subrev_u32 v{W1V+i}, {1024*i}, v{W1V+i}")
    e("s_and_b32 s36, s3, 1"); e("s_lshr_b32 s37, s3, 1")
    for a in range(2):
        e(f"s_lshl_b32 s70, s36, 4"); e(f"s_lshl_b32 s71, s37, 2"); e("s_add_u32 s70, s70, s71"); e(f"s_add_u32 s70, s70, {8*a}")
        e("v_add_u32 v46, s70, v40"); e("v_lshlrev_b32 v46, 13, v46")
        e(f"v_lshlrev_b32 v47, 1, v40"); e(f"v_xor_b32 v47, {8*a}, v47"); e("v_xor_b32 v47, v47, v45"); e("v_lshlrev_b32 v47, 4, v47")
        e(f"v_add_u32 v{WQV+a}, v46, v47")
        if a: e(f"v_subrev_u32 v{WQV+a}, 1024, v{WQV+a}")
        e("s_lshl_b32 s70, s3, 11"); e("v_lshlrev_b32 v46, 8, v40"); e("v_add_u32 v46, s70, v46"); e(f"v_add_u32 v{VV_+a}, v46, v47")
        e("s_lshl_b32 s71, s36, 3"); e(f"s_add_u32 s71, s71, {4*a}"); e("v_add_u32 v47, s71, v40"); e("v_xor_b32 v47, v47, v45"); e("v_lshlrev_b32 v47, 4, v47")
        e(f"v_add_u32 v{KV_+a}, v46, v47")
    e("s_lshl_b32 s70, s4, 8"); e("s_sub_u32 s71, 4718592, s70"); srd(p, 8, PWQ, "s71", add="s70")
    e("s_mul_i32 s70, s4, 288"); e("s_sub_u32 s71, 5308416, s70"); srd(p, 12, PW1, "s71", add="s70")
    e("s_mov_b32 s36, 0"); e("s_mov_b32 s37, 0"); e("s_mov_b32 s38, 0")
    e("s_lshl_b32 s42, s3, 11"); e(f"s_add_u32 s40, s42, {G1_BASE}"); e("s_mul_i32 s41, s3, 2304"); e(f"s_add_u32 s41, s41, {G1_BASE+8192}")
    e(f"v_mov_b32 v{FST}, 0x100000"); e("s_lshl_b32 s70, s2, 10"); e("v_mov_b32 v46, s70"); e("s_lshl_b32 s71, s3, 6"); e(f"v_add_u32 v47, s71, {L}"); e("v_cmp_eq_u32 vcc, 0, v47"); e(f"v_cndmask_b32 v{FST}, v{FST}, v46, vcc")
    e("s_and_b32 s70, s2, 0xe0"); e(f"v_and_b32 v45, 31, {L}"); e("v_add_u32 v45, s70, v45"); e(f"v_lshlrev_b32 v{FLN}, 10, v45")
    e("s_mov_b32 s55, 0"); e("s_mov_b32 s54, 0x100000")
    def w_dma(ks):
        sl = (ks % G1_NS) * G1_SLOT; tok = ("W", ks)
        masked = atom(["s_mov_b64 exec, 0xffff", ("V", f"buffer_load_dwordx4 v{W1V+2}, s[12:15], s37 offen offset:2048 lds", tok), "s_mov_b64 exec, -1"])
        return [f"s_add_u32 m0, s41, {sl}",
                ("V", f"buffer_load_dwordx4 v{W1V}, s[12:15], s37 offen lds", tok),
                ("V", f"buffer_load_dwordx4 v{W1V+1}, s[12:15], s37 offen offset:1024 lds", tok),
                masked, "s_add_u32 s37, s37, 294912",
                f"s_add_u32 m0, s40, {sl}",
                ("V", f"buffer_load_dwordx4 v{WQV}, s[8:11], s36 offen lds", tok),
                ("V", f"buffer_load_dwordx4 v{WQV+1}, s[8:11], s36 offen offset:1024 lds", tok),
                "s_add_u32 s36, s36, 262144"]
    e("s_cmp_eq_u32 s3, 3"); e("s_cbranch_scc1 L_skip_lnw")
    p.wait(vm={"lnst"})
    e("v_readfirstlane_b32 s100, v74"); e("s_cmp_eq_u32 s100, 0"); e("s_cbranch_scc1 L_nonce_retry")
    p.label("L_nonce_ok")
    e(f"v_mov_b32 v45, {FLAG_LDS+4}"); e("ds_write_b32 v45, v74"); e("s_waitcnt lgkmcnt(0)")
    p.label("L_skip_lnw")
    srd(p, DBG, PWS, 262144, add=FLAGS_OFF)
    e("s_barrier")
    e(f"v_mov_b32 v45, {FLAG_LDS+4}"); p.lds("ds_read_b32 v47, v45", "nl")
    stamp("lnst")
    def publish(val):
        return atom(["v_mov_b32 v75, s100", ("V", f"buffer_store_dword v75, v{FST}, s[{DBG}:{DBG+3}], 0 offen offset:{128*val} sc1", None)])
    def poll_issue(tok, val, areg): return ("V", f"buffer_load_dword v74, v{areg}, s[{DBG}:{DBG+3}], 0 offen offset:{128*val} sc1", tok)
    def poll_check(tok, val, areg):
        k = len(retry); retry.append((val, areg))
        def f(pp):
            pp.wait(vm={tok}); pp.e("v_cmp_eq_u32 vcc, s100, v74"); pp.e("s_cmp_eq_u64 vcc, -1"); pp.e(f"s_cbranch_scc0 L_retry{k}"); pp.label(f"L_back{k}")
        f.cost = 4
        return f
    p.put(publish(1))
    for ks in range(4):
        for x in w_dma(ks): p.put(x)
    e(f"v_lshlrev_b32 v72, 7, {L}")
    p.wait(lg={"nl"}); e("v_readfirstlane_b32 s100, v47")
    e(f"v_bfe_u32 v41, {L}, 2, 2"); e(f"v_and_b32 v42, 3, {L}"); e(f"v_bfe_u32 v43, {L}, 2, 3"); e(f"v_lshrrev_b32 v44, 2, {L}")
    e(f"v_lshlrev_b32 v{VL16}, 4, {L}")
    e("v_lshrrev_b32 v45, 1, v42"); e("v_xor_b32 v45, v45, v43"); e("v_lshlrev_b32 v45, 5, v45"); e("v_lshlrev_b32 v46, 8, v44"); e("v_add_u32 v45, v45, v46")
    e("v_and_b32 v46, 1, v42"); e("v_lshlrev_b32 v46, 4, v46"); e("v_add_u32 v45, v45, v46")
    for u in range(4):
        e(f"v_xor_b32 v46, {64*u}, v45"); e(f"v_add_u32 v{WQB[0]+u}, {G1_BASE}, v46"); e(f"v_add_u32 v{WQB[1]+u}, {G1_BASE+3*G1_SLOT}, v46")
    e("v_mul_u32_u24 v45, 288, v44"); e("v_lshlrev_b32 v46, 3, v42"); e("v_add_u32 v45, v45, v46")
    e(f"v_add_u32 v{W1B[0]}, {G1_BASE+8192}, v45"); e(f"v_add_u32 v{W1B[1]}, {G1_BASE+3*G1_SLOT+8192}, v45")
    e("s_mul_i32 s70, s5, 73728"); srd(p, 16, PWS, 73728, add="s70")
    p.put(poll_issue("f1", 1, FLN))
    late = []
    late += ["v_lshlrev_b32 v45, 5, v43", "v_lshlrev_b32 v46, 8, v44", "v_add_u32 v45, v45, v46", "v_lshlrev_b32 v46, 3, v42", "v_add_u32 v45, v45, v46", "v_add_u32 v45, 8192, v45"]
    late += [f"v_xor_b32 v{VBs+t}, {32*t}, v45" for t in range(8)]
    late += [f"v_and_b32 v45, 15, {L}", "v_xor_b32 v46, v40, v45", "v_lshlrev_b32 v46, 4, v46", "v_lshlrev_b32 v45, 8, v45", "v_add_u32 v45, v45, v46"]
    late += [f"v_xor_b32 v{KB+s}, {64*s}, v45" for s in range(4)]
    late += ["s_lshl_b32 s70, s43, 9", f"v_lshrrev_b32 v{VL8}, 1, v{VL16}", f"v_add_u32 v{VL8}, s70, v{VL8}"]
    late += [f"v_mov_b32 v{ONES+i}, 0x3f803f80" for i in range(4)]
    late += ["s_lshr_b32 s70, s4, 1", "s_lshl_b32 s70, s70, 19", "s_add_u32 s70, s70, 393216"] + srd_items(20, PK, 131072, "s70") + srd_items(24, PV, 131072, "s70")
    late += ["s_mul_i32 s70, s5, 144", "s_lshr_b32 s71, s4, 1", "s_mul_i32 s71, s71, 9", "s_add_u32 s70, s70, s71", "s_lshl_b32 s70, s70, 12", f"s_add_u32 s70, s70, {HF_OFF}"] + srd_items(28, PWS, 36864, "s70")
    late += ["s_lshl_b32 s70, s5, 7", "s_lshl_b32 s71, s4, 2", "s_add_u32 s70, s70, s71", "s_lshl_b32 s70, s70, 12", f"s_add_u32 s70, s70, {OF_OFF}"] + srd_items(32, PWS, 16384, "s70")
    late += ["s_mul_i32 s66, s43, 20480", "s_add_u32 s67, s66, 4096", "s_add_u32 s68, s66, 8192", "s_add_u32 s69, s66, 12288", "s_mov_b32 s101, 16384"]
    late += ["s_and_b32 s70, s2, 0xe7", f"v_and_b32 v45, 3, {L}", "v_lshlrev_b32 v45, 3, v45", "v_add_u32 v45, s70, v45", f"v_lshlrev_b32 v{MHO}, 10, v45"]
    late += ["s_and_b32 s70, s2, 0xe8", f"v_and_b32 v45, 7, {L}", "v_add_u32 v45, s70, v45", f"v_and_b32 v46, 8, {L}", "v_lshlrev_b32 v46, 1, v46", "v_add_u32 v45, v45, v46", f"v_lshlrev_b32 v{MRED}, 10, v45"]
    late += [f"v_mov_b32 v45, {FLAG_LDS}", "v_mov_b32 v46, 0", ("L", "ds_write_b32 v45, v46", None)]
    early = ["s_lshl_b32 s6, s6, 2", "s_add_u32 s6, s6, s3"] + [x.replace("v43", "v45").replace("v44", "v46") for x in wtouch_setup] + wtouch(320, 2, "s6")
    early += ["s_lshr_b32 s70, s6, 6", "s_lshl_b32 s71, s7, 1", "s_add_u32 s70, s70, s71", "s_lshl_b32 s70, s70, 19", "s_and_b32 s71, s6, 63", "s_lshl_b32 s71, s71, 11",
              "s_add_u32 s70, s70, s71", "s_add_u32 s70, s70, 393216"]
    early2 = srd_items(72, PK, 2048, "s70") + [("V", "buffer_load_dword v73, v72, s[72:75], 0 offen", None)]
    early3 = srd_items(72, PV, 2048, "s70") + [("V", "buffer_load_dword v73, v72, s[72:75], 0 offen", None)]
    late += ["s_mul_i32 s92, s6, 43", "s_lshr_b32 s92, s92, 9", "s_mul_i32 s92, s92, 12", "s_sub_u32 s92, s6, s92",
             "s_mul_i32 s70, s7, 663552", "s_mul_i32 s71, s6, 5184", "s_add_u32 s70, s70, s71", atom([f"s_add_u32 s72, s{PW2}, s70", f"s_addc_u32 s73, s{PW2+1}, 0"]), "s_mov_b32 s75, 0x20000",
             "s_mul_i32 s70, s7, 589824", "s_mul_i32 s71, s6, 4608", "s_add_u32 s70, s70, s71", atom([f"s_add_u32 s88, s{PWO}, s70", f"s_addc_u32 s89, s{PWO+1}, 0"]), "s_mov_b32 s91, 0x20000"]
    def late2(step):
        return [atom([f"s_cmp_eq_u32 s92, {step}", "s_cselect_b32 s74, 5184, 0", "s_cselect_b32 s90, 4608, 0"]),
                ("V", "buffer_load_dword v73, v72, s[72:75], 0 offen", None), ("V", "buffer_load_dword v73, v72, s[88:91], 0 offen", None)]
    p.put(poll_check("f1", 1, FLN))
    stamp("f1")
    def b_ld(ks):
        return [("V", f"buffer_load_dwordx4 a[{128+16*(ks%4)+4*rh}:{131+16*(ks%4)+4*rh}], v{VL16}, s[16:19], s38 offen offset:{1024*rh} sc1", ("B", ks)) for rh in range(4)] + ["s_add_u32 s38, s38, 4096"]
    def kv_dma(which, b):
        sl = (b % 4) * 16384 + (8192 if which == "V" else 0); vo, srd_ = (VV_, 24) if which == "V" else (KV_, 20)
        return [f"s_add_u32 m0, s42, {sl}", f"s_mov_b32 s39, {8192*b}",
                ("V", f"buffer_load_dwordx4 v{vo}, s[{srd_}:{srd_+3}], s39 offen lds", (which, b)),
                ("V", f"buffer_load_dwordx4 v{vo+1}, s[{srd_}:{srd_+3}], s39 offen offset:1024 lds", (which, b))]
    for ks in range(3):
        for x in b_ld(ks): p.put(x)
    e("s_barrier")
    fr = [(ks, t) for ks in range(18) for t in range(17)]
    DIST = 4
    def rd(f, half):
        ks, t = fr[f]; sl = ks % G1_NS; win = sl // 3; off = (sl % 3) * G1_SLOT
        r = AF + 4 * (f % RING) + 2 * half
        if t < 9: return ("L", f"ds_read_b64_tr_b16 v[{r}:{r+1}], v{W1B[win]} offset:{off + 32*t + 4608*half}", ("A", f))
        u, T = divmod(t - 9, 2)
        return ("L", f"ds_read_b64_tr_b16 v[{r}:{r+1}], v{WQB[win]+u} offset:{off + 8*T + 4096*half}", ("A", f))
    for f in range(DIST): p.put(rd(f, 0)); p.put(rd(f, 1))
    mf = []
    for f, (ks, t) in enumerate(fr):
        a = AF + 4 * (f % RING)
        for rh in range(4):
            d = f"v[{FA+16*t+4*rh}:{FA+16*t+4*rh+3}]" if t < 9 else f"a[{16*(t-9)+4*rh}:{16*(t-9)+4*rh+3}]"
            b = 128 + 16 * (ks % 4) + 4 * rh
            m = dict(text=f"v_mfma_f32_16x16x32_bf16 {d}, v[{a}:{a+3}], a[{b}:{b+3}], {'0' if ks == 0 else d}")
            if rh == 0:
                if f % 2 == 0: m["lg"] = {("A", f), ("A", f + 1)}
                if t == 0: m["vm"] = {("B", ks)}
            mf.append(m)
    qr = Q(); qv = Q(); qx = Q()
    for f in range(DIST, len(fr)):
        g0 = 4 * (f - DIST); qr.add(rd(f, 0), g0 - 4, g0 + 1); qr.add(rd(f, 1), g0 - 4, g0 + 2)
    for x in early: qx.add(x, 0, 60)
    for x in early2: qx.add(x, 68 + 50, 68 + 66)
    for x in early3: qx.add(x, 136 + 50, 136 + 66)
    for x in late: qx.add(x, 0, 68 * 5 + 50)
    for k in range(12):
        for x in late2(k): qx.add(x, 68 * (5 + k) + 58, 68 * (5 + k) + 66)
    kvpre = {14: [("K", 0), ("K", 1)], 15: [("V", 0), ("K", 2)], 16: [("V", 1), ("K", 3)]}
    for ks in range(18):
        g0 = 68 * ks
        if 0 < ks < 17: qv.add(("B", {("W", ks + 1)}), g0 - 1, g0 - 1)
        if prof and f"k{ks}" in prof: qv.add((lambda nm: lambda pp: stamp(nm))(f"k{ks}"), g0, g0)
        items = []
        if ks + 3 < 18: items += b_ld(ks + 3)
        if ks + 4 < 18: items += w_dma(ks + 4)
        for w, b in kvpre.get(ks, []): items += kv_dma(w, b)
        for k, x in enumerate(items): qv.add(x, g0 + 1 + 4 * k, g0 + 3 + 4 * k)
    st = []
    schedule(p, mf, [qr, qv, qx], stats=st)
    stamp("g1")
    e("s_nop 7")
    hst = []
    def silu8(regs, dst):
        n = len(regs); tt = [38 + i for i in range(n)]
        for i in range(n): e(f"v_exp_f32_e64 v{tt[i]}, -v{regs[i]}")
        for i in range(n): e(f"v_add_f32 v{tt[i]}, 1.0, v{tt[i]}")
        for i in range(n): e(f"v_rcp_f32 v{tt[i]}, v{tt[i]}")
        for i in range(n): e(f"v_mul_f32 v{regs[i]}, v{regs[i]}, v{tt[i]}")
        for i in range(n // 2): e(f"v_cvt_pk_bf16_f32 v{tt[i]}, v{regs[2*i]}, v{regs[2*i+1]}")
        for i in range(n // 2): e(f"v_accvgpr_write_b32 a{dst+i}, v{tt[i]}")
    for pr in range(4):
        for rh in range(4):
            dst = HS + 16 * pr + 4 * rh
            silu8([FA + 32 * pr + 4 * rh + i for i in range(4)] + [FA + 32 * pr + 16 + 4 * rh + i for i in range(4)], dst)
            hst.append(("V", f"buffer_store_dwordx4 a[{dst}:{dst+3}], v{VL16}, s[28:31], s{66+pr} offen offset:{1024*rh} sc1", "hst"))
    for rp in range(2):
        dst = HS + 64 + 4 * rp
        silu8([FA + 128 + 8 * rp + i for i in range(8)], dst)
        for k in range(2): hst.append(("V", f"buffer_store_dwordx2 a[{dst+2*k}:{dst+2*k+1}], v{VL8}, s[28:31], s101 offen offset:{1024*(2*rp+k)} sc1", "hst"))
    stamp("silu")
    e("s_mov_b32 s70, 0x3db504f3")
    for u in range(4):
        for rh in range(4):
            src = [16 * (2 * u + T) + 4 * rh + i for T in range(2) for i in range(4)]
            for i in range(8): e(f"v_accvgpr_read_b32 v{38+i}, a{src[i]}")
            for i in range(8): e(f"v_mul_f32 v{38+i}, s70, v{38+i}")
            for i in range(4): e(f"v_cvt_pk_bf16_f32 v{QF+16*u+4*rh+i}, v{38+2*i}, v{39+2*i}")
    VOFF = 1; VRD = [10, 11, 12]
    e(f"v_lshrrev_b32 v39, 4, v{VL16}"); e(f"v_lshrrev_b32 v13, 1, v{VL16}")
    for i in range(9):
        e(f"v_add_u32 v45, {64*i}, v39"); e("v_mul_u32_u24 v46, 3641, v45"); e("v_lshrrev_b32 v46, 16, v46")
        e("v_mul_u32_u24 v47, 18, v46"); e("v_sub_u32 v47, v45, v47"); e("v_mul_u32_u24 v46, 1152, v46"); e("v_lshlrev_b32 v47, 4, v47")
        e(f"v_add_u32 v{VOFF+i}, v46, v47")
        if i % 4: e(f"v_subrev_u32 v{VOFF+i}, {1024*(i%4)}, v{VOFF+i}")
    e("v_lshrrev_b32 v45, 2, v39"); e(f"v_mul_u32_u24 v{VRD[0]}, 288, v45"); e("v_and_b32 v45, 3, v39"); e("v_lshlrev_b32 v45, 3, v45"); e(f"v_add_u32 v{VRD[0]}, v{VRD[0]}, v45")
    e(f"v_add_u32 v{VRD[1]}, 65536, v{VRD[0]}"); e(f"v_add_u32 v{VRD[2]}, {65536+55296}, v{VRD[0]}")
    e("s_bfe_u32 s6, s2, 0x20003"); e("s_and_b32 s43, s6, 1"); e("s_mul_i32 s43, s43, 576")
    e("s_and_b32 s70, s3, 1"); e("s_mul_i32 s70, s70, 288"); e("s_add_u32 s70, s70, s43")
    e("s_cmp_ge_u32 s6, 2"); e(f"s_cselect_b32 s8, s{PW2}, s{PWO}"); e(f"s_cselect_b32 s9, s{PW2+1}, s{PWO+1}")
    e("s_mov_b32 s71, 589824"); e("s_cselect_b32 s71, 663552, s71"); e("s_cselect_b32 s18, 73728, 0"); e("s_cselect_b32 s36, 18, 16")
    e(f"s_mov_b32 s37, {OF_OFF}"); e(f"s_cselect_b32 s37, {HF_OFF}, s37"); e("s_cselect_b32 s38, 1, 0")
    e("s_sub_u32 s10, s71, s70"); e("s_mul_i32 s71, s71, s7"); e("s_add_u32 s70, s70, s71"); e("s_add_u32 s8, s8, s70"); e("s_addc_u32 s9, s9, 0")
    e("s_lshl_b32 s70, s5, 3"); e("s_add_u32 s70, s70, s7"); e("s_mul_i32 s70, s70, s36"); e("s_lshl_b32 s70, s70, 12"); e("s_add_u32 s70, s70, s37")
    e(f"s_add_u32 s16, s{PWS}, s70"); e(f"s_addc_u32 s17, s{PWS+1}, 0")
    e("s_lshr_b32 s37, s3, 1")
    for c in range(4):
        e(f"s_add_u32 s70, s6, {c}"); e("s_and_b32 s70, s70, 3"); e("s_add_u32 s71, s70, 1"); e("s_lshr_b32 s71, s71, 1"); e("s_mul_i32 s71, s71, s38")
        e("s_lshl_b32 s70, s70, 2"); e("s_add_u32 s70, s70, s71"); e(f"s_lshl_b32 s{84+c}, s70, 12"); e("s_add_u32 s70, s70, s37"); e(f"s_mul_i32 s{88+c}, s70, 36864")
    e("s_mul_i32 s93, s37, 331776"); e("s_add_u32 s93, s93, 147456")
    e("s_mul_i32 s40, s3, 9216")
    e(f"s_add_u32 s41, s40, {65536+8*9216}"); e(f"s_add_u32 s70, s40, {2*9216}"); e("s_cmp_lt_u32 s3, 2"); e("s_cselect_b32 s41, s41, s70")
    def slotpos(j):
        g, w = (j // 4) % 4, j % 4
        if g == 0: return 65536 + 9216 * w
        if g == 1: return 65536 + 9216 * (4 + w)
        if g == 2: return 9216 * w
        return 65536 + 9216 * (8 + w) if w < 2 else 9216 * (2 + w)
    def a_dma(n):
        g = n % 4
        out = ["s_mov_b32 s36, s93" if n == 8 else f"s_add_u32 s36, s{88 + n//2}, {73728 * (n % 2)}"]
        for i in range(9):
            if i % 4 == 0:
                out.append(f"s_add_u32 m0, s41, {1024*i}" if g == 3 else f"s_add_u32 m0, s40, {slotpos(4*g) + 1024*i}")
            out.append(("V", f"buffer_load_dwordx4 v{VOFF+i}, s[8:11], s36 offen offset:{1024*(i%4)} lds", ("A2", n)))
        return out
    def breg(pp_, rh): return 144 + 16 * (pp_ % 7) + 4 * rh
    def b2_ld(q):
        out = [f"s_mov_b32 s38, {4096 * (4 if q == 16 else 13)}" if q >= 16 else f"s_add_u32 s38, s{84 + q//4}, {4096 * (q % 4)}"]
        for rh in range(4):
            b = breg(q, rh)
            if q >= 16: out += [("V", f"buffer_load_dwordx2 a[{b+2*h}:{b+2*h+1}], v13, s[16:19], s38 offen offset:{1024*rh+512*h} sc1", ("B2", q)) for h in range(2)]
            else: out.append(("V", f"buffer_load_dwordx4 a[{b}:{b+3}], v{VL16}, s[16:19], s38 offen offset:{1024*rh} sc1", ("B2", q)))
        return out
    stamp("qep")
    def kfr(b): return [("K", b, T, s) for T in range(2) for s in range(4)]
    def vfr(b): return [("V", b, t) for t in range(8)]
    def areads(x, slot):
        r = AF + 4 * slot; sl = (x[1] % 4) * 16384
        if x[0] == "K": return [("L", f"ds_read_b128 v[{r}:{r+3}], v{KB+x[3]} offset:{sl + 4096*x[2]}", x)]
        return [("L", f"ds_read_b64_tr_b16 v[{r+2*h}:{r+2*h+1}], v{VBs+x[2]} offset:{sl + 4096*h}", x) for h in range(2)]
    def amf(x, slot, czero=False):
        a = AF + 4 * slot; out = []
        for rh in range(4):
            if x[0] == "K":
                _, b, T, s = x; d = SS[b % 2] + 16 * T + 4 * rh; q = QF + 16 * s + 4 * rh
                c = (("0" if czero else f"v[{NEGM+4*rh}:{NEGM+4*rh+3}]") if s == 0 else f"v[{d}:{d+3}]")
                out.append(f"v_mfma_f32_16x16x32_bf16 v[{d}:{d+3}], v[{a}:{a+3}], v[{q}:{q+3}], {c}")
            else:
                _, b, t = x; d = 16 * t + 4 * rh; pb = PP[b % 2] + 4 * rh
                out.append(f"v_mfma_f32_16x16x32_bf16 a[{d}:{d+3}], v[{a}:{a+3}], v[{pb}:{pb+3}], {'0' if b == 0 else f'a[{d}:{d+3}]'}")
        return out
    def rowmax(dst, srcs):
        e(f"v_max3_f32 v{dst}, v{srcs[0]}, v{srcs[1]}, v{srcs[2]}")
        k = 3
        while k + 1 < len(srcs): e(f"v_max3_f32 v{dst}, v{dst}, v{srcs[k]}, v{srcs[k+1]}"); k += 2
        if k < len(srcs): e(f"v_max_f32 v{dst}, v{dst}, v{srcs[k]}")
    def xmax_negm():
        for sw in ("v_permlane32_swap_b32", "v_permlane16_swap_b32"):
            for rh in range(4): e(f"v_mov_b32 v{42+rh}, v{38+rh}")
            for rh in range(4): e(f"{sw} v{38+rh}, v{42+rh}")
            for rh in range(4): e(f"v_max_f32 v{38+rh}, v{38+rh}, v{42+rh}")
        for rh in range(4):
            for i in range(4): e(f"v_sub_f32 v{NEGM+4*rh+i}, 0, v{38+rh}")
    def attention(first_pass):
        p.wait(vm={("K", 1), ("V", 0)}); e("s_barrier")
        seq = kfr(0)
        for i, x in enumerate(seq[:RING]):
            for it in areads(x, i): p.put(it)
        for i, x in enumerate(seq):
            p.wait(lg={x})
            for k, t in enumerate(amf(x, i % RING, czero=True)):
                e(t)
                if first_pass and k == 1 and i < 4: p.put(hst.pop(0))
            if i + RING < 8:
                for it in areads(seq[i + RING], i % RING): p.put(it)
        seq = kfr(1)
        for i in range(1, 15): seq += vfr(i - 1) + kfr(i + 1)
        seq += vfr(14) + vfr(15)
        S0 = 8 % RING; DISTA = 4
        for i in range(DISTA):
            for it in areads(seq[i], (S0 + i) % RING): p.put(it)
        if first_pass:
            e("s_nop 4")
            for rh in range(4): rowmax(38 + rh, [SS[0] + 16 * T + 4 * rh + i for T in range(2) for i in range(4)])
            xmax_negm()
        else: e("s_nop 7")
        mf = []; first = {}; lastm = {}
        for i, x in enumerate(seq):
            key = (x[0], x[1]); first.setdefault(key, len(mf))
            for rh, t in enumerate(amf(x, (S0 + i) % RING)):
                m = dict(text=t)
                if rh == 0 and i % 2 == 0: m["lg"] = {x} | ({seq[i + 1]} if i + 1 < len(seq) else set())
                mf.append(m)
            lastm[x] = len(mf) - 1
            if x[0] == "V" and x[2] == 3:
                for rh in range(4):
                    pb = PP[x[1] % 2] + 4 * rh; d = 128 + 4 * rh
                    mf.append(dict(text=f"v_mfma_f32_16x16x32_bf16 a[{d}:{d+3}], v[{ONES}:{ONES+3}], v[{pb}:{pb+3}], {'0' if x[1] == 0 else f'a[{d}:{d+3}]'}"))
        fstart = {i: lastm[x] - 3 for i, x in enumerate(seq)}
        qr = Q(); qv = Q(); qx = Q()
        for i in range(DISTA, len(seq)):
            lo = lastm[seq[i - RING]] if i >= RING else -1
            lo = max(lo, fstart[i - DISTA] - 3)
            for k, it in enumerate(areads(seq[i], (S0 + i) % RING)): qr.add(it, lo, fstart[i - DISTA] + 2 + k)
        for b in range(16):
            s = SS[b % 2]; dl = first[("V", b)] - 2
            for T in range(2):
                lo = -1 if b == 0 else lastm[("K", b, T, 3)] + 3
                lo_p = lastm[("V", b - 2, 7)] if b >= 2 else -1
                for rh in range(4):
                    rs = [s + 16 * T + 4 * rh + i for i in range(4)]
                    if b == 0:
                        for r_ in rs: qx.add(f"v_add_f32 v{r_}, v{r_}, v{NEGM+4*rh}", lo, dl)
                    for r_ in rs: qx.add(f"v_exp_f32 v{r_}, v{r_}", lo + rh, dl)
                    if rh > 0 or T > 0:
                        for it in pend: qx.add(it, max(lo, lo_p), dl)
                    pend = [f"v_cvt_pk_bf16_f32 v{PP[b%2]+4*rh+2*T+k}, v{rs[2*k]}, v{rs[2*k+1]}" for k in range(2)]
            for it in pend: qx.add(it, -1, dl)
        HI = o["hst_iters"]
        for i in range(0, 16):
            g0 = (first[("V", i - 1)] if i > 0 else 0) - 1
            need = set()
            if i + 1 < 16: need.add(("K", i + 1))
            need.add(("V", i))
            if first_pass and i == HI + 1: need.add("hst")
            qv.add(("B", need), g0, g0)
            if first_pass and prof and f"a{i}" in prof: qv.add((lambda nm: lambda pp: stamp(nm))(f"a{i}"), g0, g0)
            items = []
            if first_pass and i == HI + 1: items.append(publish(2))
            if i + 2 < 16: items += kv_dma("V", i + 2)
            if first_pass and i < HI:
                for _ in range(-(-len(hst) // (HI - i))): items.append(hst.pop(0))
            if i + 4 < 16: items += kv_dma("K", i + 4)
            if first_pass:
                if i == o["f2"] - 1: items.append(poll_issue("f2", 2, MHO))
                if i == o["f2"]: items += [poll_check("f2", 2, MHO)]
                if i == 12: items += a_dma(0)
                if i == 13: items += a_dma(1)
                if i == 14: items += b2_ld(4) + b2_ld(5)
                if i == 15: items += b2_ld(6)
            sp = 3 if len(items) > 11 else 5
            for k, x in enumerate(items): qv.add(x, g0 + 2 + (sp - 1) * k, min(g0 + 8 + sp * k, len(mf) - 2))
        schedule(p, mf, [qr, qv, qx], stats=st)
    attention(True)
    p.label("L_attn_done")
    stamp("attn")
    e("s_nop 7")
    for rh in range(4): e(f"v_accvgpr_read_b32 v{40+rh}, a{128+4*rh}")
    e("s_mov_b32 s70, 0x4e800000")
    e("v_add_f32 v38, v40, v41"); e("v_add_f32 v39, v42, v43"); e("v_add_f32 v38, v38, v39")
    e("v_cmp_ngt_f32 vcc, s70, v38"); e(f"v_mov_b32 v45, {FLAG_LDS}"); e("v_mov_b32 v46, 1")
    e("s_cmp_eq_u64 vcc, 0"); e("s_cbranch_scc1 L_novote")
    e("ds_write_b32 v45, v46"); e("s_waitcnt lgkmcnt(0)")
    p.label("L_novote")
    p.wait(vm={("A2", 1)}); e("s_barrier")
    p.lds("ds_read_b32 v46, v45", "vote")
    TL = o["TL"]; STG = [(64, 0), (48, 256), (32, 448)]
    def seq2(kind):
        P = 16 if kind == "s" else 18; T0 = P - TL
        return ([(q, 0, t) for q in range(4) for t in range(9)] + [(q, 1, t) for q in range(4) for t in range(9)]
                + [(q, im, t) for q in range(4, T0) for im in range(2) for t in range(9)] + [(q, im, t) for im in range(2) for t in range(9) for q in range(T0, P)])
    def rd2(fr2, f, half):
        q, im, t = fr2[f]; pos = slotpos(2 * q + im); win = 0 if pos < 65536 else (1 if pos < 65536 + 55296 else 2)
        base = [0, 65536, 65536 + 55296][win]
        r = AF + 4 * (f % RING) + 2 * half
        return ("L", f"ds_read_b64_tr_b16 v[{r}:{r+1}], v{VRD[win]} offset:{pos - base + 32*t + 4608*half}", ("A", f))
    for f in range(DIST): p.put(rd2(seq2("s"), f, 0)); p.put(rd2(seq2("s"), f, 1))
    for rh in range(4): e(f"v_rcp_f32 v{40+rh}, v{40+rh}")
    p.wait(lg={"vote"}); e("v_readfirstlane_b32 s70, v46"); e("s_xor_b32 s71, s55, 1"); e("s_and_b32 s70, s70, s71"); e("s_cbranch_scc1 L_fallback")
    e("s_cmp_ge_u32 s6, 2"); e("s_cbranch_scc1 L_gpath")
    vm0, lg0, nst0 = list(p.vm), list(p.lg), nst[0]
    p.c("@save")
    psetup = ["s_lshr_b32 s70, s2, 5", "s_lshl_b32 s70, s70, 1", "s_and_b32 s66, s6, 1", "s_add_u32 s70, s70, s66", "s_lshl_b32 s67, s70, 4",
              "s_lshl_b32 s66, s3, 2", "s_add_u32 s70, s67, s66", "s_mul_i32 s70, s70, 9216",
              "s_lshr_b32 s66, s6, 1", "s_lshl_b32 s66, s66, 3", "s_add_u32 s66, s66, s7",
              f"s_mul_i32 s69, s66, {PART_SZ}", "s_add_u32 s70, s70, s69", f"s_add_u32 s70, s70, {PART_OFF}"] + srd_items(28, PWS, 36864, "s70", w3=False)
    psetup += ["s_add_u32 s70, s67, s66", "s_mul_i32 s70, s70, 9216", f"s_add_u32 s70, s70, {PART_OFF}"] + srd_items(32, PWS, 15 * PART_SZ + 9216, "s70", w3=False)
    psetup += ["s_lshr_b32 s70, s2, 5", "s_lshl_b32 s70, s70, 4", "s_add_u32 s70, s70, s66", "s_mul_i32 s70, s70, 18432", "s_add_u32 s69, s70, s43", f"v_lshrrev_b32 v39, 4, v{VL16}"]
    for k, (per, q0) in enumerate(STG):
        psetup += [f"s_mul_i32 s70, s3, {per}", f"s_add_u32 s70, s70, {q0}", "v_add_u32 v45, s70, v39", f"v_lshlrev_b32 v{80+k}, 4, v45",
                   "v_and_b32 v46, 15, v45", "v_mul_u32_u24 v46, 1152, v46", "v_bfe_u32 v47, v45, 4, 2", "v_lshlrev_b32 v47, 3, v47", "v_add_u32 v46, v46, v47",
                   "v_and_b32 v47, 0xffc0, v45", "v_add_u32 v46, v46, v47", f"v_add_u32 v{83+k}, s69, v46"]
    psetup += srd_items(20, PX, 2359296, w3=False) + srd_items(24, POUT, 2359296, w3=False)
    def phase2(kind):
        P = 16 if kind == "s" else 18; T0 = P - TL; NG = P // 2
        fr2 = seq2(kind)
        mf = []; lastf = {}; firstq = {}
        for f, (q, im, t) in enumerate(fr2):
            a = AF + 4 * (f % RING); firstq.setdefault((q, im), len(mf))
            for rh in range(4):
                b = breg(q, rh)
                d = f"v[{FA+16*t+4*rh}:{FA+16*t+4*rh+3}]" if im == 0 else f"a[{16*t+4*rh}:{16*t+4*rh+3}]"
                m = dict(text=f"v_mfma_f32_16x16x32_bf16 {d}, v[{a}:{a+3}], a[{b}:{b+3}], {'0' if q == 0 else d}")
                if rh == 0:
                    if f % 2 == 0: m["lg"] = {("A", f), ("A", f + 1)}
                    if t == 0 and im == 0 and q >= 4: m["vm"] = {("B2", q)}
                mf.append(m)
            lastf[(q, im, t)] = len(mf) - 1
        G = lambda q: firstq[(q, 0)]
        qr = Q(); qv = Q(); qx = Q(); qs = Q(); qa = Q()
        for f in range(DIST, len(fr2)):
            g0 = 4 * (f - DIST); lo = g0 - 4
            if fr2[f][0] >= P - 2: lo = max(lo, G(T0))
            qr.add(rd2(fr2, f, 0), lo, max(lo, g0) + 1); qr.add(rd2(fr2, f, 1), lo, max(lo, g0) + 2)
        nq = 0; osp = o["o_sp"]
        for u in range(4):
            for rh in range(4):
                k = 4 * u + rh
                dl = 36 * u - 3 if kind == "s" else max(9 * (k + 1) - 2, osp * (k - 5))
                if kind == "g": assert dl < 144 + 8 * u
                lo = -1 if kind == "s" or k < 7 else osp * (k - 6) + 4
                src = [16 * (2 * u + T) + 4 * rh + i for T in range(2) for i in range(4)]
                tt = [80 + 4 * (k % 8) + i for i in range(4)] + [80 + 4 * ((k + 1) % 8) + i for i in range(4)]
                for i in range(8): qx.add(f"v_accvgpr_read_b32 v{tt[i]}, a{src[i]}", lo, dl)
                for i in range(8): qx.add(f"v_mul_f32 v{tt[i]}, v{tt[i]}, v{40+rh}", lo, dl)
                for i in range(4): qx.add(f"v_cvt_pk_bf16_f32 v{tt[i]}, v{tt[2*i]}, v{tt[2*i+1]}", lo, dl)
                if kind == "s":
                    for i in range(4): qx.add(f"v_accvgpr_write_b32 a{breg(u, rh)+i}, v{tt[i]}", lo, dl)
                srcq = f"a[{breg(u, rh)}:{breg(u, rh)+3}]" if kind == "s" else f"v[{tt[0]}:{tt[3]}]"
                l2 = max(dl + 2, osp * k)
                qs.add(atom([f"s_mov_b32 s39, {4096*u}", ("V", f"buffer_store_dwordx4 {srcq}, v{VL16}, s[32:35], s39 offen offset:{1024*rh} sc1", "ost")]), l2, l2 + 2)
        gp = o["o_pub"]
        qv.add(("B", {"ost"}), gp, gp); qv.add(publish(3), gp, gp + 2)
        for x in psetup: qx.add(x, gp, G(T0) - 40)
        qv.add(("B", {("A2", 2)}), 288 - 24, 288 - 24)
        if kind == "s":
            qv.add(poll_issue("f3", 3, MHO), o["f3"] - 8, o["f3"] - 6); qv.add(poll_check("f3", 3, MHO), o["f3"], o["f3"]); qv.add("s_mov_b32 s18, 65536", o["f3"], o["f3"])
            for k, x in enumerate(b2_ld(4) + b2_ld(5) + b2_ld(6)): qv.add(x, o["f3"], o["f3"] + 1 + k)
        win = {2: (o["a2"], 5), 3: (o["a2"] + 66, 5), 4: (G(4) + 2, 5), 5: (G(5) + 2, 5)}
        for n in range(2, NG):
            g0, step = win[n] if n in win else (G(2 * (n - 4) + 2) + 2, 5)
            for k, x in enumerate(a_dma(n)): qa.add(x, g0 + step * k, g0 + step * k + 4)
        nxt = 7
        for q in range(4, T0 + 1):
            g0 = G(q)
            need = {("A2", (q + 1) // 2)} if q % 2 else set()
            if q == T0 - 1: need.add(("A2", NG - 2))
            if q == T0: need.add(("A2", NG - 1))
            qv.add(("B", need), g0 - 1, g0 - 1)
            if prof and f"q{q}" in prof: qv.add((lambda nm: lambda pp: stamp(nm))(f"q{q}"), g0, g0)
            if q == T0: break
            items = []
            want = min(P, q + 4 + max(0, q - (T0 - 4)))
            want = min(want, q + 7)
            while nxt < want: items += b2_ld(nxt); nxt += 1
            sp = min(5, 60 // max(1, len(items)))
            for k, x in enumerate(items): qv.add(x, g0 + 4 + sp * k, g0 + 8 + sp * k)
        assert nxt == P
        for b in range(9):
            Tl = 2 * b + 1; lo = lastf[(P - 1, Tl // 9, Tl % 9)] + 4; hi = lo + 8 * TL - 6
            for rh in range(4):
                dst = 96 + 4 * (nq % 4); nq += 1
                for h in range(2):
                    im, t = divmod(2 * b + h, 9); r0 = FA + 16 * t + 4 * rh
                    if im == 1:
                        r0 = 88 + 4 * h
                        for i in range(4): qx.add(f"v_accvgpr_read_b32 v{r0+i}, a{16*t+4*rh+i}", lo, hi)
                    for i in range(2): qx.add(f"v_cvt_pk_bf16_f32 v{dst+2*h+i}, v{r0+2*i}, v{r0+2*i+1}", lo, hi)
                l2 = max(lo, G(T0) + 8 * TL + o["p_sp"] * (4 * b + rh)); hi = max(hi, l2 + 2)
                qx.add(atom([f"s_mov_b32 s68, {9216*rh + 1024*b}", ("V", f"buffer_store_dwordx4 v[{dst}:{dst+3}], v{VL16}, s[28:31], s68 offen sc1", "pst0" if b < 4 else ("pst1" if b < 7 else "pst2"))]), l2, hi)
        n = len(mf); gb = G(T0) + (n - G(T0)) * o["pub4"] // 100; gc = G(T0) + (n - G(T0)) * o["chk4"] // 100
        qs.add(("B", {"pst0"}), gb, gb); qs.add(publish(4), gb, gb + 2)
        qs.add(poll_issue("f4", 4, MRED), n - 20, n - 16)
        qt = Q()
        if prof:
            for nm in prof:
                if nm[0] == "m": qt.add((lambda nm: lambda pp: stamp(nm))(nm), int(nm[1:]), int(nm[1:]))
            for nm in prof:
                if nm[0] == "t":
                    g = G(T0) + (n - G(T0)) * int(nm[1:]) // 100; qt.add((lambda nm: lambda pp: stamp(nm))(nm), g, g)
        schedule(p, mf, [qr, qv, qx, qs, qa, qt], stats=st)
    phase2("s")
    vm_s = list(p.vm)
    e("s_branch L_p2_done")
    p.label("L_gpath")
    p.c("@restore")
    p.vm, p.lg, nst[0] = list(vm0), list(lg0), nst0
    phase2("g")
    tail = lambda v: v[[k for k, t in enumerate(v) if t == "f4"][0]:]
    assert tail(vm_s) == tail(p.vm), (vm_s, p.vm)
    p.label("L_p2_done")
    stamp("p2")
    EXH = ["-1", "0xffff", "0"]
    RB = [FA, FA + 64, FA]
    def stage_ld(k):
        if k: e(f"s_mov_b32 exec_hi, {EXH[k]}")
        for pi in list(range(8, 16)) + list(range(8)):
            e(f"s_mov_b32 s39, {pi*PART_SZ}"); p.vmem(f"buffer_load_dwordx4 v[{RB[k]+4*pi}:{RB[k]+4*pi+3}], v{80+k}, s[32:35], s39 offen sc1", ("r", k, pi))
        if k: e("s_mov_b32 exec_hi, -1")
    def stage_fin(k):
        def accum(dst, pis):
            for n_, pi in enumerate(pis):
                p.wait(vm={("r", k, pi)})
                for j in range(4):
                    src = RB[k] + 4 * pi + j
                    if n_ == 0: e(f"v_lshlrev_b32 v{dst+2*j}, 16, v{src}"); e(f"v_and_b32 v{dst+2*j+1}, 0xffff0000, v{src}")
                    else: e(f"v_dot2c_f32_bf16 v{dst+2*j}, v{src}, v18"); e(f"v_dot2c_f32_bf16 v{dst+2*j+1}, v{src}, v19")
        G_, S_, xr = 10, 2, 48 + 4 * k
        accum(G_, range(8, 16))
        e("s_nop 1")
        for j in range(8): e(f"v_exp_f32_e64 v{60+j}, -v{G_+j}")
        for j in range(8): e(f"v_add_f32 v{60+j}, 1.0, v{60+j}")
        for j in range(8): e(f"v_rcp_f32 v{60+j}, v{60+j}")
        for j in range(8): e(f"v_mul_f32 v{G_+j}, {LN2:#x}, v{G_+j}")
        for j in range(8): e(f"v_mul_f32 v{G_+j}, v{G_+j}, v{60+j}")
        accum(S_, range(8))
        p.wait(vm={"xl"})
        for j in range(4): e(f"v_lshlrev_b32 v{60+2*j}, 16, v{xr+j}"); e(f"v_and_b32 v{61+2*j}, 0xffff0000, v{xr+j}")
        for j in range(8): e(f"v_fmac_f32 v{60+j}, v{S_+j}, v{G_+j}")
        for j in range(4): e(f"v_cvt_pk_bf16_f32 v{xr+j}, v{60+2*j}, v{61+2*j}")
        if k: e(f"s_mov_b32 exec_hi, {EXH[k]}")
        p.vmem(f"buffer_store_dwordx2 v[{xr}:{xr+1}], v{83+k}, s[24:27], 0 offen"); p.vmem(f"buffer_store_dwordx2 v[{xr+2}:{xr+3}], v{83+k}, s[24:27], 0 offen offset:32")
        if k: e("s_mov_b32 exec_hi, -1")
    p.wait(vm={"pst1"}); e("s_barrier"); p.put(publish(5))
    stamp("e0")
    p.put(poll_check("f4", 4, MRED))
    stage_ld(0)
    p.wait(vm={"pst2"}); e("s_barrier"); p.put(publish(6))
    stamp("sst")
    for k in range(3):
        if k: e(f"s_mov_b32 exec_hi, {EXH[k]}")
        p.vmem(f"buffer_load_dwordx2 v[{48+4*k}:{49+4*k}], v{83+k}, s[20:23], 0 offen", "xl"); p.vmem(f"buffer_load_dwordx2 v[{50+4*k}:{51+4*k}], v{83+k}, s[20:23], 0 offen offset:32", "xl")
    e("s_mov_b32 exec_hi, -1"); e("v_mov_b32 v18, 0x3f80"); e("v_mov_b32 v19, 0x3f800000")
    p.put(poll_issue("f5", 5, MRED)); p.put(poll_check("f5", 5, MRED))
    stamp("e1")
    stage_ld(1)
    p.put(poll_issue("f6", 6, MRED))
    stage_fin(0)
    stamp("e2")
    p.put(poll_check("f6", 6, MRED))
    stamp("f5")
    stage_ld(2)
    stage_fin(1)
    stage_fin(2)
    if prof:
        p.waitall(); stamp("end")
        e("s_memrealtime s[94:95]"); e("s_waitcnt lgkmcnt(0)")
        srd(p, 72, PWS, 0x100000, add=0x8000000)
        e("s_lshl_b32 s70, s2, 2"); e("s_add_u32 s70, s70, s3"); e("s_lshl_b32 s70, s70, 6"); e("v_mov_b32 v4, s70"); e("s_mov_b64 exec, 1")
        for i in range(nst[0]): e(f"v_readlane_b32 s70, v0, {i}"); e("s_nop 1"); e(f"v_mov_b32 v5, s70"); e(f"buffer_store_dword v5, v4, s[72:75], 0 offen offset:{4*i}")
        e(f"v_mov_b32 v5, {nst[0]}"); e("buffer_store_dword v5, v4, s[72:75], 0 offen offset:56")
        e("v_mov_b32 v5, s94"); e("buffer_store_dword v5, v4, s[72:75], 0 offen offset:60")
    p.label("L_end"); e("s_endpgm")
    p.label("L_code_end")
    p.label("L_warm")
    e("s_getpc_b64 s[70:71]"); p.label("L_pc"); e(f"s_sub_u32 s72, s70, L_pc-{NAME}_kernel"); e("s_subb_u32 s73, s71, 0"); e("s_mov_b32 s74, CODE_BYTES"); e("s_mov_b32 s75, 0x20000")
    e("s_lshl_b32 s70, s6, 12"); e(f"v_lshlrev_b32 v46, 7, {L}")
    e("s_mov_b32 exec_hi, 0"); e("buffer_load_dword v73, v46, s[72:75], s70 offen"); e("s_mov_b32 exec_hi, -1")
    for x in wtouch_setup: e(x)
    for x in wtouch(0, 4, "s6"): p.put(x)
    e("s_barrier")
    for x in wtouch(128, 6, "s6"): p.put(x)
    e("s_branch L_ln_done")
    p.label("L_nonce_retry")
    e("s_sleep 1"); e("v_mov_b32 v45, 0"); e(f"buffer_load_dword v74, v45, s[{DBG}:{DBG+3}], 0 offen sc1"); e("s_waitcnt vmcnt(0)")
    e("v_readfirstlane_b32 s100, v74"); e("s_sub_u32 s54, s54, 1"); e("s_cbranch_scc1 L_nonce_ok"); e("s_cmp_eq_u32 s100, 0"); e("s_cbranch_scc1 L_nonce_retry"); e("s_branch L_nonce_ok")
    for k, (val, areg) in enumerate(retry):
        p.label(f"L_retry{k}")
        e("s_sleep 1"); e(f"buffer_load_dword v74, v{areg}, s[{DBG}:{DBG+3}], 0 offen offset:{128*val} sc1"); e("s_waitcnt vmcnt(0)")
        e("s_sub_u32 s54, s54, 1"); e(f"s_cbranch_scc1 L_back{k}")
        e("v_cmp_eq_u32 vcc, s100, v74"); e("s_cmp_eq_u64 vcc, -1"); e(f"s_cbranch_scc0 L_retry{k}"); e(f"s_branch L_back{k}")
    p.label("L_fallback")
    p.waitall(); e("s_mov_b32 s55, 1")
    for rh in range(4): e(f"v_mov_b32 v{38+rh}, 0xff800000")
    e("s_mov_b32 s39, 0")
    p.label("L_maxloop")
    e("s_barrier"); e("s_mov_b32 m0, s42"); e("s_nop 0")
    e(f"buffer_load_dwordx4 v{KV_}, s[20:23], s39 offen lds"); e(f"buffer_load_dwordx4 v{KV_+1}, s[20:23], s39 offen offset:1024 lds")
    e("s_waitcnt vmcnt(0)"); e("s_barrier")
    for i, x in enumerate(kfr(0)):
        p.put(areads(x, i % RING)[0]); p.waitall(vm=False)
        for t in amf(x, i % RING, czero=True): e(t)
    e("s_nop 7")
    for rh in range(4): rowmax(42, [SS[0] + 16 * T + 4 * rh + i for T in range(2) for i in range(4)]); e(f"v_max_f32 v{38+rh}, v{38+rh}, v42")
    e("s_add_u32 s39, s39, 8192"); e("s_cmp_lt_u32 s39, 131072"); e("s_cbranch_scc1 L_maxloop")
    xmax_negm()
    e("s_barrier")
    for w, b in [("K", 0), ("K", 1), ("V", 0), ("K", 2), ("V", 1), ("K", 3)]:
        for x in kv_dma(w, b): p.put(x)
    attention(False)
    p.waitall(); e("s_branch L_attn_done")
    print("sched", st)
    return p

def build(path, prof=None, opt=None):
    KN = NAME + "_kernel"
    p = gen(prof, opt)
    out, nn = check(p.L); print(path, "nops", nn, "lines", len(out))
    s = ("; @launch grid=(256,1,1) block=(256,1,1) lds=163840\n" + '.amdgcn_target "amdgcn-amd-amdhsa--gfx950"\n'
         + f".set CODE_BYTES, L_code_end - {KN}\n" + khead(KN) + "\n".join(out) + "\n" + kd(KN))
    open(path, "w").write(s)
PA = ["start", "pf", "xarr", "lnc", "lnst", "f1", "g1", "silu", "qep", "attn", "p2", "sst", "f5", "end"]
PB = ["attn", "q4", "q5", "q6", "q8", "q10", "p2", "sst", "f5", "end"]
PC = ["f1", "k0", "k1", "k3", "k6", "k9", "k12", "k15", "g1", "qep", "a0", "a3", "a6", "a9"]
PD = ["qep", "a0", "a2", "a4", "a6", "a8", "a10", "a11", "a12", "a13", "a14", "a15", "attn", "j2"]
if __name__ == "__main__":
    build("m3.s")
    build("m3_pc.s", ["f1", "k0", "k1", "k2", "k3", "k4", "k5", "k6", "k8", "k10", "k12", "k14", "k16", "g1"])
    build("m3_pf.s", ["attn", "m0", "m72", "m144", "m216", "q4", "q5", "q6", "q7", "q8", "q9", "q10", "t0", "p2"])
```

```python
import re
NAME = "recurrent_scan__sliding_block_cached__dense_activation_silu__prompt"

def vr(base, n=1, kind="v"):
    return f"{kind}[{base}:{base+n-1}]" if n > 1 else f"{kind}{base}"

class R:
    def __init__(s, kind, base, n=1): s.k, s.b, s.n = kind, base, n
    def __str__(s): return vr(s.b, s.n, s.k)
    def sub(s, off, n=1): assert off + n <= s.n; return R(s.k, s.b + off, n)

_REG = re.compile(r"^(-|\|)?(?:abs\()?([vas])(?:\[(\d+):(\d+)\]|(\d+))\)?\|?$")
def regs_of(tok):
    tok = tok.strip()
    if tok in ("vcc", "exec", "m0", "scc"): return {tok}
    if tok in ("vcc_lo", "vcc_hi"): return {"vcc"}
    if tok in ("exec_lo", "exec_hi"): return {"exec"}
    m = _REG.match(tok)
    if not m: return set()
    k = m.group(2)
    if m.group(3) is not None: return {(k, i) for i in range(int(m.group(3)), int(m.group(4)) + 1)}
    return {(k, int(m.group(5)))}

TRANS = ("v_exp_f32", "v_rcp_f32", "v_rsq_f32", "v_sqrt_f32", "v_log_f32")
def parse(text):
    t = text.split(";")[0].strip()
    op, _, rest = t.partition(" ")
    ops = [o.strip() for o in re.split(r",(?![^\[]*\])", rest)] if rest else []
    mods = []
    if ops:
        last = ops[-1].split()
        if last: ops[-1] = last[0]; mods = last[1:]
    RS = lambda l: set().union(*[regs_of(o) for o in l]) if l else set()
    if op.startswith("v_mfma"): return op, "mfma", regs_of(ops[0]), RS(ops[1:]) | {"exec"}
    if op.startswith("ds_read") or op.startswith("ds_bpermute") or op.startswith("ds_swizzle"): return op, "lds_rd", regs_of(ops[0]), RS(ops[1:])
    if op.startswith("ds_write"): return op, "lds_wr", set(), RS(ops)
    if op.startswith("buffer_load"):
        if "lds" in mods: return op, "dma", set(), RS(ops) | {"m0"}
        return op, "vm_ld", regs_of(ops[0]), RS(ops[1:])
    if op.startswith("buffer_store"): return op, "vm_st", set(), RS(ops)
    if op.startswith("buffer_atomic"):
        return op, ("vm_ld" if "sc0" in mods else "vm_st"), (regs_of(ops[0]) if "sc0" in mods else set()), RS(ops)
    if op.startswith("buffer_"): return op, "other", set(), set()
    if op in ("s_waitcnt", "s_barrier", "s_nop", "s_endpgm", "s_setprio", "s_sleep") or op.startswith("s_cbranch") or op == "s_branch":
        return op, op if op in ("s_waitcnt", "s_barrier", "s_nop") else "other", set(), set()
    if op.startswith("s_load") or op in ("s_memtime", "s_memrealtime"): return op, "smem", regs_of(ops[0]), RS(ops[1:])
    if op.startswith("s_cmp"): return op, "salu", {"scc"}, RS(ops)
    if op.startswith("s_"):
        w = regs_of(ops[0])
        if "saveexec" in op: w |= {"exec"}
        return op, "salu", w | {"scc"}, RS(ops[1:])
    if op.startswith("v_"):
        base = op.replace("_e32", "").replace("_e64", "")
        kind = "trans" if base in TRANS else "valu"
        if base.startswith("v_permlane"): return op, "perm", RS(ops[:2]), RS(ops[:2])
        if base.startswith("v_cmp"): return op, kind, regs_of(ops[0]), RS(ops[1:])
        w = regs_of(ops[0]); r = RS(ops[1:])
        if "_co_" in base: w |= regs_of(ops[1]); r = RS(ops[2:])
        if base.startswith("v_fmac") or base.startswith("v_dot2c"): r |= w
        if base in ("v_readfirstlane_b32", "v_readlane_b32"): return op, "rdlane", w, r
        if base == "v_writelane_b32": return op, "valu", w, r
        if any(m.startswith(("row_", "quad_perm", "wave_")) for m in mods): kind = "dpp"
        return op, kind, w, r
    raise ValueError("cannot parse: " + text)

class Prog:
    def __init__(self):
        self.L = []; self.lg = []; self.vm = []
    def e(self, s): self.L.append("  " + s)
    def label(self, s): self.L.append(s + ":")
    def c(self, s): self.L.append("  ; " + s)
    def lds(self, s, tok=None): self.e(s); self.lg.append(tok)
    def vmem(self, s, tok=None): self.e(s); self.vm.append(tok)
    def _need(self, q, toks):
        idx = [i for i, t in enumerate(q) if t in toks]
        return None if not idx else len(q) - 1 - max(idx)
    def needs_wait(self, lg=(), vm=()):
        return self._need(self.lg, lg) is not None or self._need(self.vm, vm) is not None
    def wait(self, lg=(), vm=()):
        parts = []
        n = self._need(self.vm, vm)
        if n is not None:
            n = min(n, 63); parts.append(f"vmcnt({n})"); self.vm = self.vm[len(self.vm) - n:] if n else []
        n = self._need(self.lg, lg)
        if n is not None:
            n = min(n, 15); parts.append(f"lgkmcnt({n})"); self.lg = self.lg[len(self.lg) - n:] if n else []
        if parts: self.e("s_waitcnt " + " ".join(parts))
        return bool(parts)
    def waitall(self, lg=True, vm=True):
        self.e("s_waitcnt " + " ".join((["vmcnt(0)"] if vm else []) + (["lgkmcnt(0)"] if lg else [])))
        if vm: self.vm = []
        if lg: self.lg = []
    def put(self, it):
        if callable(it): it(self)
        elif isinstance(it, str): self.e(it)
        elif it[0] == "L": self.lds(it[1], it[2])
        elif it[0] == "V": self.vmem(it[1], it[2])
        elif it[0] == "W": self.wait(lg=it[1], vm=it[2])
        elif it[0] == "B": self.wait(vm=it[1]); self.e("s_barrier")
        else: raise ValueError(it)
    def text(self): return "\n".join(self.L) + "\n"

def cost_of(it):
    if callable(it): return getattr(it, 'cost', 1)
    if isinstance(it, str):
        op = it.split()[0]
        return 2 if op.replace("_e32", "").replace("_e64", "") in TRANS else 1
    if it[0] == "B": return 2
    if it[0] == "V": return 1
    return 1

class Q:
    def __init__(s, name=""): s.items = []; s.name = name; s.pos = 0
    def add(s, item, lo=-1, hi=10**9): s.items.append((lo, hi, item))

def schedule(p, mf, queues, budget=2, stats=None):
    n = len(mf)
    for q in queues:
        hi = 10**9; out = []
        for lo, h, it in reversed(q.items):
            hi = min(hi, h)
            assert lo <= max(hi, -1) or lo >= n, f"infeasible window lo={lo} hi={hi} for {it}"
            out.append((lo, hi, it))
        q.items = out[::-1]
    over = 0
    def fill(g, bud):
        used = 0
        while True:
            cands = [q for q in queues if q.pos < len(q.items) and q.items[q.pos][0] <= g]
            if not cands: break
            cands.sort(key=lambda q: q.items[q.pos][1])
            pick = None
            for q in cands:
                lo, hi, it = q.items[q.pos]
                if hi <= g or used + cost_of(it) <= bud or (used == 0 and cost_of(it) > budget and bud == budget): pick = q; break
            if pick is None: break
            it = pick.items[pick.pos][2]; pick.pos += 1
            p.put(it); used += cost_of(it)
        return used
    fill(-1, 10**6 if False else 0)
    for i, m in enumerate(mf):
        p.wait(lg=m.get("lg", ()), vm=m.get("vm", ()))
        p.e(m["text"])
        bud = budget
        if i + 1 < n and m.get("resv", True):
            nx = mf[i + 1]
            if nx.get("lg") or nx.get("vm"): bud -= 1
        u = fill(i, bud)
        res = budget - bud
        if u + res > budget: over += u + res - budget
    left = 0
    for q in queues: left += len(q.items) - q.pos
    fill(10**9, 10**6)
    if stats is not None: stats.append((n, over, left))

def check(lines, fix=True):
    out = []
    last = {}
    mfc = {}
    stw = {}
    pos = 0
    lgq = []; vmq = []
    nnop = 0; nocount = False
    for ln in lines:
        t = ln.strip()
        if t == "; @nocount": nocount = True; continue
        if t == "; @save": saved = (dict(last), dict(mfc), dict(stw), pos, list(lgq), list(vmq)); continue
        if t == "; @restore":
            last, mfc, stw, pos, lgq, vmq = dict(saved[0]), dict(saved[1]), dict(saved[2]), saved[3], list(saved[4]), list(saved[5]); continue
        if not t or t.startswith(";") or t.startswith(".") or t.endswith(":"):
            out.append(ln); continue
        op, kind, w, r = parse(t)
        if kind == "s_waitcnt":
            m = re.search(r"vmcnt\((\d+)\)", t)
            if m: n = int(m.group(1)); vmq = vmq[len(vmq) - n:] if n else []
            m = re.search(r"lgkmcnt\((\d+)\)", t)
            if m: n = int(m.group(1)); lgq = lgq[len(lgq) - n:] if n else []
        for q, nm in ((lgq, "lgkm"), (vmq, "vm")):
            for dst in q:
                if dst & (r | w) and not (kind in ("lds_rd", "vm_ld") and not (dst & r)):
                    raise AssertionError(f"use of un-waited {nm} load dest {sorted(dst & (r|w), key=str)[:2]} in: {t}")
        need = 0
        def req(regs, pred, ws):
            nonlocal need
            for x in regs:
                if x in last and pred(last[x][0]): need = max(need, ws - (pos - last[x][1] - 1))
        isv = lambda k: k in ("valu", "trans", "perm", "dpp", "rdlane", "dot")
        if kind == "mfma":
            ops = [o.strip() for o in re.split(r",(?![^\[]*\])", t.partition(" ")[2])]
            D, A, B, C = [regs_of(o.split()[0]) for o in ops[:4]]
            req(A | B | C, isv, 2)
            ws = 12 if "32x32" in op else 8
            req(A | B, lambda k: k.startswith("mfma"), ws)
            if C and C != D: req(C, lambda k: k.startswith("mfma"), ws)
            elif C:
                for x in C:
                    if x in last and last[x][0].startswith("mfma") and last[x][2] != (op, min(D)): need = max(need, ws - (pos - last[x][1] - 1))
            if C != D: req(D, lambda k: k.startswith("mfma"), ws)
            req({"exec"}, isv, 4)
        else:
            for x in (r | w):
                if x in last and last[x][0].startswith("mfma"):
                    ws = 12 if last[x][0] == "mfma32" else 8
                    need = max(need, ws - (pos - last[x][1] - 1))
            if isv(kind):
                for x in w:
                    if x in mfc: need = max(need, mfc[x][1] - (pos - mfc[x][0] - 1))
                    if x in stw: need = max(need, 2 - (pos - stw[x] - 1))
                if kind != "trans": req(r, lambda k: k == "trans", 1)
                if not op.startswith("v_dot"): req(r | w, lambda k: k == "dot", 3)
                else: req(r - w, lambda k: k == "dot", 3)
                req({x for x in r if x == "vcc" or (isinstance(x, tuple) and x[0] == "s")}, isv, 2)
            if kind in ("lds_rd", "vm_ld"):
                for x in w:
                    if x in stw: need = max(need, 1 - (pos - stw[x] - 1))
            if kind == "perm" or kind == "dpp": req({x for x in r if isinstance(x, tuple) and x[0] == "v"}, isv, 2)
            if kind == "rdlane": req(r, isv, 1)
            if kind in ("vm_ld", "vm_st", "dma"): req({x for x in r if isinstance(x, tuple) and x[0] == "s"}, isv, 5)
            if kind == "dma": req({"m0"}, lambda k: k == "salu", 1)
            if kind in ("lds_rd", "lds_wr", "vm_ld", "vm_st", "dma"): req(r, lambda k: k == "trans", 1)
        if need > 0:
            if not fix: raise AssertionError(f"hazard: need {need} more wait states before: {t}")
            out.append(f"  s_nop {need - 1}"); pos += need; nnop += 1
        out.append(ln)
        if kind == "s_nop": pos += int(t.split()[1]) + 1
        else: pos += 1
        p_ = pos - 1
        if kind == "mfma":
            k = "mfma32" if "32x32" in op else "mfma16"
            for x in w: last[x] = (k, p_, (op, min(w)))
            for x in C: mfc[x] = (p_, 7 if k == "mfma32" else 3)
        else:
            for x in w: last[x] = ("dot" if op.startswith("v_dot") else kind, p_, None)
        if kind == "vm_st" and ("x4" in op or "x3" in op):
            ops = [o.strip() for o in re.split(r",(?![^\[]*\])", t.partition(" ")[2])]
            for x in regs_of(ops[0]): stw[x] = p_
        if kind in ("lds_rd", "lds_wr", "smem"): lgq.append(set(w))
        if kind in ("vm_ld", "vm_st", "dma"):
            if not nocount: vmq.append(set(w))
            nocount = False
    return out, nnop

def kd(name, vgpr=512, accum=256, sgpr=102):
    return "\n".join([
        '.section .rodata,"a"', ".p2align 6", f".amdhsa_kernel {name}",
        f"  .amdhsa_next_free_vgpr {vgpr}", f"  .amdhsa_next_free_sgpr {sgpr}", f"  .amdhsa_accum_offset {accum}",
        "  .amdhsa_group_segment_fixed_size 0", "  .amdhsa_kernarg_size 88", "  .amdhsa_user_sgpr_count 2",
        "  .amdhsa_user_sgpr_kernarg_segment_ptr 1", "  .amdhsa_system_sgpr_workgroup_id_x 1", ".end_amdhsa_kernel", ""])

def khead(name):
    return "\n".join([".text", f".globl {name}", ".p2align 8", f".type {name},@function", f"{name}:", ""])
```

```python
import sys
sys.path.insert(0, "gen")
from asmlib import *
XNF_OFF = 0; HF_OFF = 0x400000; OF_OFF = 0x1800000; PART_OFF = 0x3000000; FLAGS_OFF = 0x7000000
PART_SZ = 2359296
LOG2E = 0x3fb8aa3b; LN2 = 0x3f317218
G1_BASE = 65536; G1_SLOT = 17408; G1_NS = 8
def g1pos(ks):
    k = ks % G1_NS
    return G1_BASE + k * G1_SLOT if k < 5 else (k - 5) * G1_SLOT
FLAG_LDS = 163824; LNB = 160768

def srd(p, d, lo, nrec, add=None):
    for x in srd_items(d, lo, nrec, add): p.put(x)
def atom(items):
    def f(pp):
        for x in items: pp.put(x)
    f.cost = len(items)
    return f
def srd_items(d, lo, nrec, add=None, w3=True):
    out = [f"s_mov_b32 s{d}, s{lo}", f"s_mov_b32 s{d+1}, s{lo+1}"] if add is None else [atom([f"s_add_u32 s{d}, s{lo}, {add}", f"s_addc_u32 s{d+1}, s{lo+1}, 0"])]
    out.append(f"s_mov_b32 s{d+2}, {nrec}")
    if w3: out.append(f"s_mov_b32 s{d+3}, 0x20000")
    return out

def gen(prof=None, opt=None):
    o = dict(pk=True, TL=6, hst_iters=5, f2=11, o_sp=10, o_pub0=11, o_pub=200, f3=230, a2=150, p_sp=10, pub4=60, chk4=85)
    o.update(opt or {})
    PART_OFF = o.get("part_off", 0x3000000)
    p = Prog(); e = p.e
    nst = [0]
    def stamp(name):
        if prof and name in prof:
            e("s_memrealtime s[94:95]" if o.get("rt") else "s_memtime s[94:95]"); e("s_waitcnt lgkmcnt(0)"); e(f"v_writelane_b32 v0, s94, {nst[0]}"); p.lg = []; nst[0] += 1
    PX, PK, PV, PWQ, PWO, PW1, PW2, POUT, PDBG, PWS = 44, 46, 48, 50, 52, 56, 58, 60, 62, 64
    WQB = [1, 5, 98]; W1B = [9, 10, 102]; WQV = 11; W1V = 13; VL16 = 16; KV_ = 17; VV_ = 19; KB = 21; VBs = 25; VL8 = 33; ONES = 34
    FLN = 76; FST = 77; MHO = 78; MRED = 79
    AF = 48; RING = 6; DBG = 96
    FA = 112; SS = [192, 224]; PP = [160, 176]; NEGM = 144; QF = 80; HS = 144
    L = "v39"
    retry = []
    wtouch_setup = [f"v_mul_u32_u24 v44, 7282, {L}", "v_lshrrev_b32 v44, 16, v44", "v_mul_u32_u24 v47, 9, v44", f"v_sub_u32 v43, {L}, v47", "v_mul_u32_u24 v44, 9216, v44",
                    "v_lshlrev_b32 v43, 7, v43", "v_add_u32 v93, v43, v44", f"v_lshrrev_b32 v44, 3, {L}", "v_lshlrev_b32 v44, 13, v44", f"v_and_b32 v43, 7, {L}", "v_lshlrev_b32 v43, 7, v43", "v_add_u32 v94, v43, v44"]
    def wtouch(row0, nrows, idx):
        return ([f"s_mul_i32 s70, {idx}, {nrows}", f"s_add_u32 s70, s70, {row0}", "s_mul_i32 s71, s70, 9216", "s_mul_i32 s74, s7, 1152", "s_add_u32 s71, s71, s74"]
                + srd_items(72, PW1, (nrows - 1) * 9216 + 1152, "s71") + [("V", "buffer_load_dword v73, v93, s[72:75], 0 offen", None)]
                + ["s_lshl_b32 s71, s70, 13", "s_lshl_b32 s74, s7, 10", "s_add_u32 s71, s71, s74"]
                + srd_items(72, PWQ, (nrows - 1) * 8192 + 1024, "s71", w3=False) + [("V", "buffer_load_dword v73, v94, s[72:75], 0 offen", None)])
    e("s_cmp_ge_u32 s2, 256"); e("s_cbranch_scc1 L_end")
    e("s_load_dwordx16 s[44:59], s[0:1], 0"); e("s_load_dwordx4 s[60:63], s[0:1], 64"); e("s_load_dwordx2 s[64:65], s[0:1], 80")
    e("v_lshrrev_b32 v38, 6, v0"); e("v_and_b32 v39, 63, v0"); e("v_readfirstlane_b32 s3, v38")
    stamp("start")
    e(f"v_and_b32 v40, 7, {L}"); e("s_lshl_b32 s6, s2, 3"); e("v_add_u32 v42, s6, v40"); e("v_mul_u32_u24 v42, 1152, v42")
    e(f"v_lshrrev_b32 v41, 3, {L}"); e("v_lshlrev_b32 v43, 4, v41"); e("v_add_u32 v42, v42, v43"); e("s_lshl_b32 s6, s3, 7"); e("v_add_u32 v42, s6, v42")
    e("s_mov_b32 s10, 2359296"); e("s_mov_b32 s11, 0x20000")
    e("s_waitcnt lgkmcnt(0)")
    e(f"s_mov_b32 s8, s{PX}"); e(f"s_mov_b32 s9, s{PX+1}")
    srd(p, DBG, PDBG, 256)
    e("v_mov_b32 v45, 0")
    e("s_lshr_b32 s6, s2, 3"); e("s_and_b32 s7, s2, 7")
    e("s_cmp_lg_u32 s3, 3"); e("s_cbranch_scc1 L_ln")
    e("s_cmp_lg_u32 s2, 0"); e("s_cbranch_scc1 L_warm")
    e("s_memrealtime s[70:71]"); e("s_waitcnt lgkmcnt(0)"); e("s_or_b32 s70, s70, 1"); e("v_mov_b32 v44, s70")
    e("s_mov_b64 exec, 1"); e(f"buffer_store_dword v44, v45, s[{DBG}:{DBG+3}], 0 offen sc1"); e("s_mov_b64 exec, -1"); e("s_branch L_warm")
    p.label("L_ln")
    for i in range(3): e(f"buffer_load_dwordx4 v[{80+4*i}:{83+4*i}], v42, s[8:11], 0 offen offset:{384*i}")
    p.vm = ["x"]
    stamp("pf")
    p.wait(vm={"x"})
    stamp("xarr")
    for i in range(12): e(f"v_lshlrev_b32 v{112+2*i}, 16, v{80+i}"); e(f"v_and_b32 v{113+2*i}, 0xffff0000, v{80+i}")
    e("v_add_f32 v42, v112, v113"); e("v_mul_f32 v43, v112, v112"); e("v_add_f32 v44, v114, v115"); e("v_mul_f32 v45, v113, v113")
    e("v_fmac_f32 v43, v114, v114"); e("v_fmac_f32 v45, v115, v115")
    for i in range(4, 24): e(f"v_add_f32 v{42+2*(i%2)}, v{42+2*(i%2)}, v{112+i}"); e(f"v_fmac_f32 v{43+2*(i%2)}, v{112+i}, v{112+i}")
    e("v_add_f32 v42, v42, v44"); e("v_add_f32 v43, v43, v45")
    for r_ in (42, 43): e(f"v_add_f32_dpp v{r_}, v{r_}, v{r_} row_ror:8 row_mask:0xf bank_mask:0xf")
    for sw in ("v_permlane16_swap_b32", "v_permlane32_swap_b32"):
        e("v_mov_b32 v44, v42"); e("v_mov_b32 v45, v43"); e(f"{sw} v42, v44"); e(f"{sw} v43, v45"); e("v_add_f32 v42, v42, v44"); e("v_add_f32 v43, v43, v45")
    e(f"v_lshlrev_b32 v46, 5, v40"); e(f"v_add_u32 v46, {LNB}, v46"); e("s_lshl_b32 s70, s3, 3"); e("v_add_u32 v47, s70, v46")
    p.lds("ds_write_b64 v47, v[42:43]")
    e("s_lshr_b32 s70, s2, 3"); e("s_mul_i32 s70, s70, 18"); e("s_lshl_b32 s71, s3, 1"); e("s_add_u32 s70, s70, s71"); e("s_lshl_b32 s70, s70, 12")
    e("s_bfe_u32 s71, s2, 0x20001"); e("s_lshl_b32 s71, s71, 10"); e("s_add_u32 s70, s70, s71"); e("s_and_b32 s71, s2, 1"); e("s_lshl_b32 s71, s71, 7"); e("s_add_u32 s70, s70, s71")
    e(f"v_lshrrev_b32 v38, 5, {L}"); e("v_lshlrev_b32 v38, 12, v38"); e("v_and_b32 v41, 3, v41"); e("v_lshlrev_b32 v41, 8, v41"); e("v_add_u32 v38, v38, v41")
    e("v_lshlrev_b32 v41, 4, v40"); e("v_add_u32 v38, v38, v41"); e("v_add_u32 v38, s70, v38")
    srd(p, 16, PWS, 2359296)
    p.waitall(vm=False); e("s_barrier")
    p.lds("ds_read_b128 v[144:147], v46"); p.lds("ds_read_b64 v[148:149], v46 offset:16")
    e("s_mov_b32 s70, 0x3ae38e39")
    p.waitall(vm=False)
    e("v_add_f32 v144, v144, v146"); e("v_add_f32 v145, v145, v147")
    e("v_add_f32 v144, v144, v148"); e("v_add_f32 v145, v145, v149")
    e("v_mul_f32 v47, s70, v144"); e("v_mul_f32 v45, s70, v145"); e("v_fma_f32 v45, -v47, v47, v45"); e("v_max_f32 v45, 0, v45")
    def rb(v): e(f"v_cvt_pk_bf16_f32 v{v}, v{v}, v{v}"); e(f"v_lshlrev_b32 v{v}, 16, v{v}")
    rb(45); rb(47); e("v_add_f32 v45, 0x3727c5ac, v45"); rb(45); e("v_sqrt_f32 v45, v45"); rb(45)
    e("v_rcp_f32 v45, v45"); e(f"v_mul_f32 v45, {LOG2E:#x}, v45"); e("v_mul_f32 v47, v47, v45")
    for i in range(24): e(f"v_fma_f32 v{112+i}, v{112+i}, v45, -v47")
    for i in range(12): e(f"v_cvt_pk_bf16_f32 v{80+i}, v{112+2*i}, v{113+2*i}")
    e("v_mov_b32 v44, 0"); p.vmem(f"buffer_load_dword v74, v44, s[{DBG}:{DBG+3}], 0 offen sc1")
    e("s_mov_b32 s70, 24576"); e("s_mov_b32 s71, 49152")
    p.vmem("buffer_store_dwordx4 v[80:83], v38, s[16:19], 0 offen sc1", "lnst"); p.vmem("buffer_store_dwordx4 v[84:87], v38, s[16:19], s70 offen sc1", "lnst")
    p.vmem("buffer_store_dwordx4 v[88:91], v38, s[16:19], s71 offen sc1", "lnst")
    p.label("L_ln_done")
    stamp("lnc")
    e("s_and_b32 s4, s2, 7"); e("s_lshl_b32 s4, s4, 2"); e("s_bfe_u32 s5, s2, 0x20003"); e("s_add_u32 s4, s4, s5")
    e("s_lshr_b32 s5, s2, 5"); e("s_lshl_b32 s5, s5, 2"); e("s_add_u32 s5, s5, s3")
    e(f"v_lshrrev_b32 v40, 4, {L}"); e(f"v_and_b32 v45, 15, {L}")
    e("s_mul_i32 s70, s3, 144"); e("s_and_b32 s43, s4, 1"); e("s_lshl_b32 s71, s43, 1")
    for i in range(3):
        e(f"s_add_u32 s36, s70, {64*i}"); e(f"v_add_u32 v41, s36, {L}")
        e("v_mul_u32_u24 v46, 3641, v41"); e("v_lshrrev_b32 v46, 16, v46"); e("v_mul_u32_u24 v47, 18, v46"); e("v_sub_u32 v41, v41, v47")
        e("v_add_u32 v41, s71, v41"); e("v_subrev_u32 v47, 18, v41"); e("v_min_u32 v41, v41, v47"); e("v_lshlrev_b32 v41, 4, v41")
        e("v_bfe_u32 v47, v46, 2, 2"); e("v_lshlrev_b32 v47, 3, v47"); e("v_and_b32 v72, 3, v46"); e("v_add_u32 v47, v47, v72")
        e("v_lshrrev_b32 v46, 4, v46"); e("v_lshlrev_b32 v46, 2, v46"); e("v_add_u32 v47, v47, v46"); e("v_mul_u32_u24 v47, 9216, v47")
        e(f"v_add_u32 v{W1V+i}, v47, v41")
        if i: e(f"v_subrev_u32 v{W1V+i}, {1024*i}, v{W1V+i}")
    e("s_and_b32 s36, s3, 1"); e("s_lshr_b32 s37, s3, 1")
    for a in range(2):
        e(f"s_lshl_b32 s70, s36, 4"); e(f"s_lshl_b32 s71, s37, 2"); e("s_add_u32 s70, s70, s71"); e(f"s_add_u32 s70, s70, {8*a}")
        e("v_add_u32 v46, s70, v40"); e("v_lshlrev_b32 v46, 13, v46")
        e(f"v_lshlrev_b32 v47, 1, v40"); e(f"v_xor_b32 v47, {8*a}, v47"); e("v_xor_b32 v47, v47, v45"); e("v_lshlrev_b32 v47, 4, v47")
        e(f"v_add_u32 v{WQV+a}, v46, v47")
        if a: e(f"v_subrev_u32 v{WQV+a}, 1024, v{WQV+a}")
        e("s_lshl_b32 s70, s3, 11"); e("v_lshlrev_b32 v46, 8, v40"); e("v_add_u32 v46, s70, v46"); e(f"v_add_u32 v{VV_+a}, v46, v47")
        e("s_lshl_b32 s71, s36, 3"); e(f"s_add_u32 s71, s71, {4*a}"); e("v_add_u32 v47, s71, v40"); e("v_xor_b32 v47, v47, v45"); e("v_lshlrev_b32 v47, 4, v47")
        e(f"v_add_u32 v{KV_+a}, v46, v47")
    e("s_lshl_b32 s70, s4, 8"); e("s_sub_u32 s71, 4718592, s70"); srd(p, 8, PWQ, "s71", add="s70")
    e("s_mul_i32 s70, s4, 288"); e("s_sub_u32 s71, 5308416, s70"); srd(p, 12, PW1, "s71", add="s70")
    e("s_mov_b32 s36, 0"); e("s_mov_b32 s37, 0"); e("s_mov_b32 s38, 0")
    e("s_lshl_b32 s42, s3, 11"); e("s_mov_b32 s40, s42"); e("s_mul_i32 s41, s3, 2304"); e("s_add_u32 s41, s41, 8192")
    e(f"v_mov_b32 v{FST}, 0x100000"); e("s_lshl_b32 s70, s2, 10"); e("v_mov_b32 v46, s70"); e("s_lshl_b32 s71, s3, 6"); e(f"v_add_u32 v47, s71, {L}"); e("v_cmp_eq_u32 vcc, 0, v47"); e(f"v_cndmask_b32 v{FST}, v{FST}, v46, vcc")
    e("s_and_b32 s70, s2, 0xe0"); e(f"v_and_b32 v45, 31, {L}"); e("v_add_u32 v45, s70, v45"); e(f"v_lshlrev_b32 v{FLN}, 10, v45")
    e("s_mov_b32 s55, 0"); e("s_mov_b32 s54, 0x100000")
    def w_dma(ks):
        sl = g1pos(ks); tok = ("W", ks)
        masked = atom(["s_mov_b64 exec, 0xffff", ("V", f"buffer_load_dwordx4 v{W1V+2}, s[12:15], s37 offen offset:2048 lds", tok), "s_mov_b64 exec, -1"])
        return [f"s_add_u32 m0, s41, {sl}",
                ("V", f"buffer_load_dwordx4 v{W1V}, s[12:15], s37 offen lds", tok),
                ("V", f"buffer_load_dwordx4 v{W1V+1}, s[12:15], s37 offen offset:1024 lds", tok),
                masked, "s_add_u32 s37, s37, 294912",
                f"s_add_u32 m0, s40, {sl}",
                ("V", f"buffer_load_dwordx4 v{WQV}, s[8:11], s36 offen lds", tok),
                ("V", f"buffer_load_dwordx4 v{WQV+1}, s[8:11], s36 offen offset:1024 lds", tok),
                "s_add_u32 s36, s36, 262144"]
    e("s_cmp_eq_u32 s3, 3"); e("s_cbranch_scc1 L_skip_lnw")
    p.wait(vm={"lnst"})
    e("v_readfirstlane_b32 s100, v74"); e("s_cmp_eq_u32 s100, 0"); e("s_cbranch_scc1 L_nonce_retry")
    p.label("L_nonce_ok")
    e(f"v_mov_b32 v45, {FLAG_LDS+4}"); e("ds_write_b32 v45, v74"); e("s_waitcnt lgkmcnt(0)")
    p.label("L_skip_lnw")
    srd(p, DBG, PWS, 262144, add=FLAGS_OFF)
    e("s_barrier")
    e(f"v_mov_b32 v45, {FLAG_LDS+4}"); p.lds("ds_read_b32 v47, v45", "nl")
    stamp("lnst")
    def publish(val):
        return atom(["v_mov_b32 v75, s100", ("V", f"buffer_store_dword v75, v{FST}, s[{DBG}:{DBG+3}], 0 offen offset:{128*val} sc1", None)])
    def poll_issue(tok, val, areg): return ("V", f"buffer_load_dword v74, v{areg}, s[{DBG}:{DBG+3}], 0 offen offset:{128*val} sc1", tok)
    def poll_check(tok, val, areg):
        k = len(retry); retry.append((val, areg))
        def f(pp):
            pp.wait(vm={tok}); pp.e("v_cmp_eq_u32 vcc, s100, v74"); pp.e("s_cmp_eq_u64 vcc, -1"); pp.e(f"s_cbranch_scc0 L_retry{k}"); pp.label(f"L_back{k}")
        f.cost = 4
        return f
    p.put(publish(1))
    for ks in range(4):
        for x in w_dma(ks): p.put(x)
    e(f"v_lshlrev_b32 v72, 7, {L}")
    p.wait(lg={"nl"}); e("v_readfirstlane_b32 s100, v47")
    late_b = []
    e(f"v_bfe_u32 v41, {L}, 2, 2"); e(f"v_and_b32 v42, 3, {L}"); e(f"v_bfe_u32 v43, {L}, 2, 3"); e(f"v_lshrrev_b32 v44, 2, {L}")
    e(f"v_lshlrev_b32 v{VL16}, 4, {L}")
    e("v_lshrrev_b32 v45, 1, v42"); e("v_xor_b32 v45, v45, v43"); e("v_lshlrev_b32 v45, 5, v45"); e("v_lshlrev_b32 v46, 8, v44"); e("v_add_u32 v45, v45, v46")
    e("v_and_b32 v46, 1, v42"); e("v_lshlrev_b32 v46, 4, v46"); e("v_add_u32 v45, v45, v46")
    for u in range(4):
        e(f"v_xor_b32 v46, {64*u}, v45"); e(f"v_add_u32 v{WQB[0]+u}, {G1_BASE}, v46"); e(f"v_add_u32 v{WQB[1]+u}, {G1_BASE+3*G1_SLOT}, v46"); late_b.append(f"v_subrev_u32 v{WQB[2]+u}, {G1_BASE}, v{WQB[0]+u}")
    e("v_mul_u32_u24 v45, 288, v44"); e("v_lshlrev_b32 v46, 3, v42"); e("v_add_u32 v45, v45, v46")
    e(f"v_add_u32 v{W1B[0]}, {G1_BASE+8192}, v45"); e(f"v_add_u32 v{W1B[1]}, {G1_BASE+3*G1_SLOT+8192}, v45"); late_b.append(f"v_subrev_u32 v{W1B[2]}, {G1_BASE}, v{W1B[0]}")
    e("s_mul_i32 s70, s5, 73728"); srd(p, 16, PWS, 73728, add="s70")
    p.put(poll_issue("f1", 1, FLN))
    late = []
    late += ["v_lshlrev_b32 v45, 5, v43", "v_lshlrev_b32 v46, 8, v44", "v_add_u32 v45, v45, v46", "v_lshlrev_b32 v46, 3, v42", "v_add_u32 v45, v45, v46", "v_add_u32 v45, 8192, v45"]
    late += [f"v_xor_b32 v{VBs+t}, {32*t}, v45" for t in range(8)]
    late += [f"v_and_b32 v45, 15, {L}", "v_xor_b32 v46, v40, v45", "v_lshlrev_b32 v46, 4, v46", "v_lshlrev_b32 v45, 8, v45", "v_add_u32 v45, v45, v46"]
    late += [f"v_xor_b32 v{KB+s}, {64*s}, v45" for s in range(4)]
    late += ["s_lshl_b32 s70, s43, 9", f"v_lshrrev_b32 v{VL8}, 1, v{VL16}", f"v_add_u32 v{VL8}, s70, v{VL8}"]
    late += [f"v_mov_b32 v{ONES+i}, 0x3f803f80" for i in range(4)]
    late += ["s_lshr_b32 s70, s4, 1", "s_lshl_b32 s70, s70, 19", "s_add_u32 s70, s70, 393216"] + srd_items(20, PK, 131072, "s76") + srd_items(24, PV, 131072, "s76")
    late += ["s_mul_i32 s70, s5, 144", "s_lshr_b32 s71, s4, 1", "s_mul_i32 s71, s71, 9", "s_add_u32 s70, s70, s71", "s_lshl_b32 s70, s70, 12", f"s_add_u32 s70, s70, {HF_OFF}"] + srd_items(28, PWS, 36864, "s76")
    late += ["s_lshl_b32 s70, s5, 7", "s_lshl_b32 s71, s4, 2", "s_add_u32 s70, s70, s71", "s_lshl_b32 s70, s70, 12", f"s_add_u32 s70, s70, {OF_OFF}"] + srd_items(32, PWS, 16384, "s76")
    late += ["s_mul_i32 s66, s43, 20480", "s_add_u32 s67, s66, 4096", "s_add_u32 s68, s66, 8192", "s_add_u32 s69, s66, 12288", "s_mov_b32 s101, 16384"]
    late += ["s_and_b32 s70, s2, 0xe7", f"v_and_b32 v45, 3, {L}", "v_lshlrev_b32 v45, 3, v45", "v_add_u32 v45, s70, v45", f"v_lshlrev_b32 v{MHO}, 10, v45"]
    late += ["s_and_b32 s70, s2, 0xe8", f"v_and_b32 v45, 7, {L}", "v_add_u32 v45, s70, v45", f"v_lshlrev_b32 v{MRED}, 10, v45"]
    nct = [0]
    def ctouch(step, va, vb):
        def f(pp):
            k = nct[0]; nct[0] += 1
            pp.e(f"s_cmp_lg_u32 s92, {step}"); pp.e(f"s_cbranch_scc1 L_ct{k}"); pp.c("@nocount")
            pp.e(f"buffer_load_dword v73, v{va}, s[72:75], 0 offen"); pp.c("@nocount"); pp.e(f"buffer_load_dword v73, v{vb}, s[88:91], 0 offen"); pp.label(f"L_ct{k}")
        f.cost = 2
        return f
    early = late_b + ["s_lshl_b32 s6, s6, 2", "s_add_u32 s6, s6, s3"] + [x.replace("v43", "v45").replace("v44", "v46") for x in wtouch_setup]
    early += ["s_lshl_b32 s70, s6, 1", "s_add_u32 s70, s70, 320", "s_mul_i32 s71, s70, 9216", "s_mul_i32 s74, s7, 1152", "s_add_u32 s71, s71, s74"] + srd_items(72, PW1, 10368, "s71")
    early += ["s_lshl_b32 s71, s70, 13", "s_lshl_b32 s74, s7, 10", "s_add_u32 s71, s71, s74"] + srd_items(88, PWQ, 9216, "s71") + ["s_lshr_b32 s92, s6, 5"]
    def early_w(step):
        return [ctouch(step, 93, 94)]
    early2 = ["s_lshr_b32 s70, s6, 6", "s_lshl_b32 s71, s7, 1", "s_add_u32 s70, s70, s71", "s_lshl_b32 s70, s70, 19", "s_and_b32 s71, s6, 63", "s_lshl_b32 s71, s71, 11",
              "s_add_u32 s70, s70, s71", "s_add_u32 s70, s70, 393216"] + srd_items(72, PK, 2048, "s70", w3=False) + srd_items(88, PV, 2048, "s70", w3=False) + ["s_and_b32 s92, s6, 3"]
    def early_kv(step):
        return [ctouch(step, 72, 72)]
    def ren(x):
        if isinstance(x, str): return x.replace("s70", "s76").replace("s71", "s77").replace("v45", "v95").replace("v46", "v96")
        return x
    late0 = [ren(x) for x in late]; late = []
    late += ["s_and_b32 s92, s6, 7",
             "s_mul_i32 s70, s7, 663552", "s_mul_i32 s71, s6, 5184", "s_add_u32 s70, s70, s71", atom([f"s_add_u32 s72, s{PW2}, s70", f"s_addc_u32 s73, s{PW2+1}, 0"]), "s_mov_b32 s75, 0x20000",
             "s_mul_i32 s70, s7, 589824", "s_mul_i32 s71, s6, 4608", "s_add_u32 s70, s70, s71", atom([f"s_add_u32 s88, s{PWO}, s70", f"s_addc_u32 s89, s{PWO+1}, 0"]), "s_mov_b32 s91, 0x20000", "s_mov_b32 s74, 5184", "s_mov_b32 s90, 4608"]
    def late2(step):
        return [ctouch(step, 72, 72)]
    VOFF = 1; VRD = [10, 11, 12]
    p2v = []
    for i in range(9):
        p2v += [f"v_add_u32 v95, {64*i}, {L}", "v_mul_u32_u24 v96, 3641, v95", "v_lshrrev_b32 v96, 16, v96", "v_mul_u32_u24 v97, 18, v96", "v_sub_u32 v97, v95, v97",
                "v_mul_u32_u24 v96, 1152, v96", "v_lshlrev_b32 v97, 4, v97", "v_add_u32 v96, v96, v97"] + ([f"v_subrev_u32 v96, {1024*(i%4)}, v96"] if i % 4 else []) + [f"v_accvgpr_write_b32 a{216+i}, v96"]
    p2v += ["v_mul_u32_u24 v95, 288, v44", "v_lshlrev_b32 v96, 3, v42", "v_add_u32 v95, v95, v96", "v_accvgpr_write_b32 a225, v95", "v_add_u32 v96, 65536, v95", "v_accvgpr_write_b32 a226, v96",
            f"v_add_u32 v96, {65536+55296}, v95", "v_accvgpr_write_b32 a227, v96", f"v_lshrrev_b32 v96, 1, v{VL16}", "v_accvgpr_write_b32 a228, v96"]
    p2s = ["s_bfe_u32 s6, s2, 0x20003", "s_and_b32 s43, s6, 1", "s_mul_i32 s43, s43, 576", "s_and_b32 s70, s3, 1", "s_mul_i32 s70, s70, 288", "s_add_u32 s70, s70, s43",
           "s_mov_b32 s71, 589824", f"s_mov_b32 s37, {OF_OFF}",
           atom(["s_cmp_ge_u32 s6, 2", f"s_cselect_b32 s8, s{PW2}, s{PWO}", f"s_cselect_b32 s9, s{PW2+1}, s{PWO+1}"]),
           atom(["s_cmp_ge_u32 s6, 2", "s_cselect_b32 s71, 663552, s71", "s_cselect_b32 s18, 73728, 0"]),
           atom(["s_cmp_ge_u32 s6, 2", "s_cselect_b32 s36, 18, 16", f"s_cselect_b32 s37, {HF_OFF}, s37"]), "s_lshr_b32 s38, s6, 1",
           "s_sub_u32 s10, s71, s70", "s_mul_i32 s71, s71, s7", "s_add_u32 s70, s70, s71", atom(["s_add_u32 s8, s8, s70", "s_addc_u32 s9, s9, 0"]),
           "s_lshl_b32 s70, s5, 3", "s_add_u32 s70, s70, s7", "s_mul_i32 s70, s70, s36", "s_lshl_b32 s70, s70, 12", "s_add_u32 s70, s70, s37",
           atom([f"s_add_u32 s16, s{PWS}, s70", f"s_addc_u32 s17, s{PWS+1}, 0"]), "s_lshr_b32 s37, s3, 1"]
    for c in range(4):
        p2s += [f"s_add_u32 s70, s6, {c}", "s_and_b32 s70, s70, 3", "s_add_u32 s71, s70, 1", "s_lshr_b32 s71, s71, 1", "s_mul_i32 s71, s71, s38",
                "s_lshl_b32 s70, s70, 2", "s_add_u32 s70, s70, s71", f"s_lshl_b32 s{84+c}, s70, 12", "s_add_u32 s70, s70, s37", f"s_mul_i32 s{88+c}, s70, 36864"]
    p2s += ["s_mul_i32 s93, s37, 331776", "s_add_u32 s93, s93, 147456", "s_mul_i32 s40, s3, 9216", f"s_add_u32 s41, s40, {65536+8*9216}", f"s_add_u32 s70, s40, {2*9216}",
            atom(["s_cmp_lt_u32 s3, 2", "s_cselect_b32 s41, s41, s70"])]
    p.put(poll_check("f1", 1, FLN))
    stamp("f1")
    def b_ld(ks):
        return [("V", f"buffer_load_dwordx4 a[{128+16*(ks%5)+4*rh}:{131+16*(ks%5)+4*rh}], v{VL16}, s[16:19], s38 offen offset:{1024*rh} sc1", ("B", ks)) for rh in range(4)] + ["s_add_u32 s38, s38, 4096"]
    def kv_dma(which, b):
        sl = (b % 4) * 16384 + (8192 if which == "V" else 0); vo, srd_ = (VV_, 24) if which == "V" else (KV_, 20)
        return [f"s_add_u32 m0, s42, {sl}", f"s_mov_b32 s39, {8192*b}",
                ("V", f"buffer_load_dwordx4 v{vo}, s[{srd_}:{srd_+3}], s39 offen lds", (which, b)),
                ("V", f"buffer_load_dwordx4 v{vo+1}, s[{srd_}:{srd_+3}], s39 offen offset:1024 lds", (which, b))]
    for ks in range(3):
        for x in b_ld(ks): p.put(x)
    e("s_barrier")
    fr = [(ks, t) for ks in range(18) for t in range(17)]
    DIST = 4
    def rd(f, half):
        ks, t = fr[f]; sl = ks % G1_NS; win = 0 if sl < 3 else (1 if sl < 5 else 2); off = (sl - [0, 3, 5][win]) * G1_SLOT
        r = AF + 4 * (f % RING) + 2 * half
        if t < 9: return ("L", f"ds_read_b64_tr_b16 v[{r}:{r+1}], v{W1B[win]} offset:{off + 32*t + 4608*half}", ("A", f))
        u, T = divmod(t - 9, 2)
        return ("L", f"ds_read_b64_tr_b16 v[{r}:{r+1}], v{WQB[win]+u} offset:{off + 8*T + 4096*half}", ("A", f))
    for f in range(DIST): p.put(rd(f, 0)); p.put(rd(f, 1))
    mf = []
    for f, (ks, t) in enumerate(fr):
        a = AF + 4 * (f % RING)
        for rh in range(4):
            d = f"v[{FA+16*t+4*rh}:{FA+16*t+4*rh+3}]" if t < 9 else f"a[{16*(t-9)+4*rh}:{16*(t-9)+4*rh+3}]"
            b = 128 + 16 * (ks % 5) + 4 * rh
            m = dict(text=f"v_mfma_f32_16x16x32_bf16 {d}, v[{a}:{a+3}], a[{b}:{b+3}], {'0' if ks == 0 else d}")
            if rh == 0:
                if f % 2 == 0: m["lg"] = {("A", f), ("A", f + 1)}
                if t == 0: m["vm"] = {("B", ks)}
            mf.append(m)
    qr = Q(); qv = Q(); qx = Q(); qx2 = Q()
    for f in range(DIST, len(fr)):
        g0 = 4 * (f - DIST); qr.add(rd(f, 0), g0 - 4, g0 + 1); qr.add(rd(f, 1), g0 - 4, g0 + 2)
    for x in early: qx.add(x, 0, 50)
    for k in range(4):
        for x in early_w(k): qx.add(x, 68 * k + 56, 68 * k + 66)
        for x in late0[k * len(late0) // 4:(k + 1) * len(late0) // 4]: qx2.add(x, 68 * k, 68 * (k + 2))
    for x in early2: qx.add(x, 68 * 4, 68 * 4 + 50)
    for k in range(4):
        for x in early_kv(k): qx.add(x, 68 * (4 + k) + 56, 68 * (4 + k) + 66)
    for x in late: qx.add(x, 68 * 8, 68 * 8 + 50)
    for k in range(8):
        for x in late2(k): qx.add(x, 68 * (8 + k) + 56, 68 * (8 + k) + 66)
    for x in p2v: qx2.add(x, 68 * 6, 68 * 12)
    for x in p2s: qx.add(x, 68 * 16, 68 * 18 - 8)
    kvpre = {16: [("K", 0), ("K", 1), ("V", 0)], 17: [("K", 2), ("V", 1), ("K", 3)]}; nw = 4
    for ks in range(18):
        g0 = 68 * ks
        if 0 < ks < 17: qv.add(("B", {("W", ks + 1)}), g0 - 1, g0 - 1)
        if prof and f"k{ks}" in prof: qv.add((lambda nm: lambda pp: stamp(nm))(f"k{ks}"), g0, g0)
        items = []
        if ks == 0: items += b_ld(3)
        if ks + 4 < 18: items += b_ld(ks + 4)
        wn = min(18, ks + 8, 2 * ks + 6)
        while nw < wn: items += w_dma(nw); nw += 1
        for w, b in kvpre.get(ks, []): items += kv_dma(w, b)
        sp = 4 if len(items) <= 14 else 2
        for k, x in enumerate(items): qv.add(x, g0 + 1 + sp * k, g0 + 3 + sp * k)
    st = []
    schedule(p, mf, [qr, qv, qx, qx2], stats=st)
    stamp("g1")
    e("s_nop 7")
    hst = []
    def silu8(regs, dst):
        n = len(regs); tt = [38 + i for i in range(n)]
        for i in range(n): e(f"v_exp_f32_e64 v{tt[i]}, -v{regs[i]}")
        if o["pk"]:
            for i in range(0, n, 2): e(f"v_pk_add_f32 v[{tt[i]}:{tt[i]+1}], v[{tt[i]}:{tt[i]+1}], 1.0 op_sel_hi:[1,0]")
        else:
            for i in range(n): e(f"v_add_f32 v{tt[i]}, 1.0, v{tt[i]}")
        for i in range(n): e(f"v_rcp_f32 v{tt[i]}, v{tt[i]}")
        if o["pk"]:
            for i in range(0, n, 2): e(f"v_pk_mul_f32 v[{regs[i]}:{regs[i]+1}], v[{regs[i]}:{regs[i]+1}], v[{tt[i]}:{tt[i]+1}]")
        else:
            for i in range(n): e(f"v_mul_f32 v{regs[i]}, v{regs[i]}, v{tt[i]}")
        for i in range(n // 2): e(f"v_cvt_pk_bf16_f32 v{tt[i]}, v{regs[2*i]}, v{regs[2*i+1]}")
        for i in range(n // 2): e(f"v_accvgpr_write_b32 a{dst+i}, v{tt[i]}")
    for pr in range(4):
        for rh in range(4):
            dst = HS + 16 * pr + 4 * rh
            silu8([FA + 32 * pr + 4 * rh + i for i in range(4)] + [FA + 32 * pr + 16 + 4 * rh + i for i in range(4)], dst)
            hst.append(("V", f"buffer_store_dwordx4 a[{dst}:{dst+3}], v{VL16}, s[28:31], s{66+pr} offen offset:{1024*rh} sc1", "hst"))
    for rp in range(2):
        dst = HS + 64 + 4 * rp
        silu8([FA + 128 + 8 * rp + i for i in range(8)], dst)
        for k in range(2): hst.append(("V", f"buffer_store_dwordx2 a[{dst+2*k}:{dst+2*k+1}], v{VL8}, s[28:31], s101 offen offset:{1024*(2*rp+k)} sc1", "hst"))
    stamp("silu")
    e("s_mov_b32 s70, 0x3db504f3"); e("s_mov_b32 s71, 0x3db504f3")
    for u in range(4):
        for rh in range(4):
            src = [16 * (2 * u + T) + 4 * rh + i for T in range(2) for i in range(4)]
            for i in range(8): e(f"v_accvgpr_read_b32 v{38+i}, a{src[i]}")
            if o["pk"]:
                for i in range(0, 8, 2): e(f"v_pk_mul_f32 v[{38+i}:{39+i}], v[{38+i}:{39+i}], s[70:71]")
            else:
                for i in range(8): e(f"v_mul_f32 v{38+i}, s70, v{38+i}")
            for i in range(4): e(f"v_cvt_pk_bf16_f32 v{QF+16*u+4*rh+i}, v{38+2*i}, v{39+2*i}")
    for i in range(13): e(f"v_accvgpr_read_b32 v{1+i}, a{216+i}")
    def slotpos(j):
        g, w = (j // 4) % 4, j % 4
        if g == 0: return 65536 + 9216 * w
        if g == 1: return 65536 + 9216 * (4 + w)
        if g == 2: return 9216 * w
        return 65536 + 9216 * (8 + w) if w < 2 else 9216 * (2 + w)
    def a_dma(n):
        g = n % 4
        c_, ub = (0, 2 * n) if n < 2 else (1 + (n - 2) % 3, 2 * ((n - 2) // 3))
        out = ["s_mov_b32 s36, s93" if n == 8 else f"s_add_u32 s36, s{88 + c_}, {36864 * ub}"]
        for i in range(9):
            if i % 4 == 0:
                out.append(f"s_add_u32 m0, s41, {1024*i}" if g == 3 else f"s_add_u32 m0, s40, {slotpos(4*g) + 1024*i}")
            out.append(("V", f"buffer_load_dwordx4 v{VOFF+i}, s[8:11], s36 offen offset:{1024*(i%4)} lds", ("A2", n)))
        return out
    def breg(pp_, rh): return 144 + 16 * (pp_ % 7) + 4 * rh
    def b2_ld(q):
        out = [f"s_mov_b32 s38, {4096 * (4 if q == 16 else 13)}" if q >= 16 else f"s_add_u32 s38, s{85 + (q//2 - 2) % 3}, {4096 * (2 * ((q//2 - 2) // 3) + q % 2)}"]
        for rh in range(4):
            b = breg(q, rh)
            if q >= 16: out += [("V", f"buffer_load_dwordx2 a[{b+2*h}:{b+2*h+1}], v13, s[16:19], s38 offen offset:{1024*rh+512*h} sc1", ("B2", q)) for h in range(2)]
            else: out.append(("V", f"buffer_load_dwordx4 a[{b}:{b+3}], v{VL16}, s[16:19], s38 offen offset:{1024*rh} sc1", ("B2", q)))
        return out
    stamp("qep")
    def kfr(b): return [("K", b, T, s) for T in range(2) for s in range(4)]
    def vfr(b): return [("V", b, t) for t in range(8)]
    def areads(x, slot):
        r = AF + 4 * slot; sl = (x[1] % 4) * 16384
        if x[0] == "K": return [("L", f"ds_read_b128 v[{r}:{r+3}], v{KB+x[3]} offset:{sl + 4096*x[2]}", x)]
        return [("L", f"ds_read_b64_tr_b16 v[{r+2*h}:{r+2*h+1}], v{VBs+x[2]} offset:{sl + 4096*h}", x) for h in range(2)]
    def amf(x, slot, czero=False):
        a = AF + 4 * slot; out = []
        for rh in range(4):
            if x[0] == "K":
                _, b, T, s = x; d = SS[b % 2] + 16 * T + 4 * rh; q = QF + 16 * s + 4 * rh
                c = (("0" if czero else f"v[{NEGM+4*rh}:{NEGM+4*rh+3}]") if s == 0 else f"v[{d}:{d+3}]")
                out.append(f"v_mfma_f32_16x16x32_bf16 v[{d}:{d+3}], v[{a}:{a+3}], v[{q}:{q+3}], {c}")
            else:
                _, b, t = x; d = 16 * t + 4 * rh; pb = PP[b % 2] + 4 * rh
                out.append(f"v_mfma_f32_16x16x32_bf16 a[{d}:{d+3}], v[{a}:{a+3}], v[{pb}:{pb+3}], {'0' if b == 0 else f'a[{d}:{d+3}]'}")
        return out
    def rowmax(dst, srcs):
        e(f"v_max3_f32 v{dst}, v{srcs[0]}, v{srcs[1]}, v{srcs[2]}")
        k = 3
        while k + 1 < len(srcs): e(f"v_max3_f32 v{dst}, v{dst}, v{srcs[k]}, v{srcs[k+1]}"); k += 2
        if k < len(srcs): e(f"v_max_f32 v{dst}, v{dst}, v{srcs[k]}")
    def xmax_negm():
        for sw in ("v_permlane32_swap_b32", "v_permlane16_swap_b32"):
            for rh in range(4): e(f"v_mov_b32 v{42+rh}, v{38+rh}")
            for rh in range(4): e(f"{sw} v{38+rh}, v{42+rh}")
            for rh in range(4): e(f"v_max_f32 v{38+rh}, v{38+rh}, v{42+rh}")
        for rh in range(4):
            for i in range(4): e(f"v_sub_f32 v{NEGM+4*rh+i}, 0, v{38+rh}")
    def attention(first_pass):
        p.wait(vm={("K", 1), ("V", 0)}); e("s_barrier")
        seq = kfr(0)
        for i, x in enumerate(seq[:RING]):
            for it in areads(x, i): p.put(it)
        for i, x in enumerate(seq):
            p.wait(lg={x})
            for k, t in enumerate(amf(x, i % RING, czero=True)):
                e(t)
                if first_pass and k == 1 and i < 4: p.put(hst.pop(0))
            if i + RING < 8:
                for it in areads(seq[i + RING], i % RING): p.put(it)
        seq = kfr(1)
        for i in range(1, 15): seq += vfr(i - 1) + kfr(i + 1)
        seq += vfr(14) + vfr(15)
        S0 = 8 % RING; DISTA = 4
        for i in range(DISTA):
            for it in areads(seq[i], (S0 + i) % RING): p.put(it)
        if first_pass:
            e("s_nop 4")
            for rh in range(4): rowmax(38 + rh, [SS[0] + 16 * T + 4 * rh + i for T in range(2) for i in range(4)])
            xmax_negm()
        else: e("s_nop 7")
        mf = []; first = {}; lastm = {}
        for i, x in enumerate(seq):
            key = (x[0], x[1]); first.setdefault(key, len(mf))
            for rh, t in enumerate(amf(x, (S0 + i) % RING)):
                m = dict(text=t)
                if rh == 0 and i % 2 == 0: m["lg"] = {x} | ({seq[i + 1]} if i + 1 < len(seq) else set())
                mf.append(m)
            lastm[x] = len(mf) - 1
            if x[0] == "V" and x[2] == (0 if x[1] == 15 else 3):
                for rh in range(4):
                    pb = PP[x[1] % 2] + 4 * rh; d = 128 + 4 * rh
                    mf.append(dict(text=f"v_mfma_f32_16x16x32_bf16 a[{d}:{d+3}], v[{ONES}:{ONES+3}], v[{pb}:{pb+3}], {'0' if x[1] == 0 else f'a[{d}:{d+3}]'}"))
        fstart = {i: lastm[x] - 3 for i, x in enumerate(seq)}
        qr = Q(); qv = Q(); qx = Q()
        for i in range(DISTA, len(seq)):
            lo = lastm[seq[i - RING]] if i >= RING else -1
            lo = max(lo, fstart[i - DISTA] - 3)
            for k, it in enumerate(areads(seq[i], (S0 + i) % RING)): qr.add(it, lo, fstart[i - DISTA] + 2 + k)
        for b in range(16):
            s = SS[b % 2]; dl = first[("V", b)] - 2
            for T in range(2):
                lo = -1 if b == 0 else lastm[("K", b, T, 3)] + 3
                lo_p = lastm[("V", b - 2, 7)] if b >= 2 else -1
                for rh in range(4):
                    rs = [s + 16 * T + 4 * rh + i for i in range(4)]
                    if b == 0:
                        for r_ in rs: qx.add(f"v_add_f32 v{r_}, v{r_}, v{NEGM+4*rh}", lo, dl)
                    for r_ in rs: qx.add(f"v_exp_f32 v{r_}, v{r_}", lo + rh, dl)
                    if rh > 0 or T > 0:
                        for it in pend: qx.add(it, max(lo, lo_p), dl)
                    pend = [f"v_cvt_pk_bf16_f32 v{PP[b%2]+4*rh+2*T+k}, v{rs[2*k]}, v{rs[2*k+1]}" for k in range(2)]
            for it in pend: qx.add(it, -1, dl)
        lo = lastm[("V", 15, 0)] + 4 + 6; hi = len(mf) - 6
        for rh in range(4): qx.add(f"v_accvgpr_read_b32 v{40+rh}, a{128+4*rh}", lo, hi)
        for x in ["v_add_f32 v38, v40, v41", "v_add_f32 v39, v42, v43", "s_mov_b32 s70, 0x4e800000", "v_add_f32 v38, v38, v39", "v_cmp_ngt_f32 vcc, s70, v38",
                  "s_lshl_b32 s70, s3, 2", f"s_add_u32 s70, s70, {FLAG_LDS-16}", "v_mov_b32 v45, s70", atom(["s_cmp_lg_u64 vcc, 0", "s_cselect_b32 s70, 1, 0"]), "v_mov_b32 v46, s70",
                  ("L", "ds_write_b32 v45, v46", "vw"), f"v_mov_b32 v45, {FLAG_LDS-16}"] + [f"v_rcp_f32 v{40+rh}, v{40+rh}" for rh in range(4)]: qx.add(x, lo, hi)
        HI = o["hst_iters"]
        for i in range(0, 16):
            g0 = (first[("V", i - 1)] if i > 0 else 0) - 1
            need = set()
            if i + 1 < 16: need.add(("K", i + 1))
            need.add(("V", i))
            if first_pass and i == HI + 1: need.add("hst")
            qv.add(("B", need), g0, g0)
            if first_pass and prof and f"a{i}" in prof: qv.add((lambda nm: lambda pp: stamp(nm))(f"a{i}"), g0, g0)
            items = []
            if first_pass and i == HI + 1: items.append(publish(2))
            if i + 2 < 16: items += kv_dma("V", i + 2)
            if first_pass and i < HI:
                for _ in range(-(-len(hst) // (HI - i))): items.append(hst.pop(0))
            if i + 4 < 16: items += kv_dma("K", i + 4)
            if first_pass:
                if i == o["f2"] - 1: items.append(poll_issue("f2", 2, MHO))
                if i == o["f2"]: items += [poll_check("f2", 2, MHO)]
                if i == 12: items += a_dma(0)
                if i == 13: items += a_dma(1)
                if i == 14: items += b2_ld(4) + b2_ld(5)
                if i == 15: items += b2_ld(6)
            sp = 3 if len(items) > 11 else 5
            for k, x in enumerate(items): qv.add(x, g0 + 2 + (sp - 1) * k, min(g0 + 8 + sp * k, len(mf) - 2))
        schedule(p, mf, [qr, qv, qx], stats=st)
    attention(True)
    p.label("L_attn_done")
    stamp("attn")
    p.wait(lg={"vw"}, vm={("A2", 1)}); e("s_barrier")
    p.lds("ds_read_b128 v[44:47], v45", "vote")
    TL = o["TL"]; STG = [(64, 0), (48, 256), (32, 448)]
    def seq2(kind):
        P = 16 if kind == "s" else 18; T0 = P - TL
        return ([(q, 0, t) for q in range(4) for t in range(9)] + [(q, 1, t) for t in range(9) for q in range(4)]
                + [(q, im, t) for q in range(4, T0) for im in range(2) for t in range(9)] + [(q, im, t) for im in range(2) for t in range(9) for q in range(T0, P)])
    def rd2(fr2, f, half):
        q, im, t = fr2[f]; pos = slotpos(2 * q + im); win = 0 if pos < 65536 else (1 if pos < 65536 + 55296 else 2)
        base = [0, 65536, 65536 + 55296][win]
        r = AF + 4 * (f % RING) + 2 * half
        return ("L", f"ds_read_b64_tr_b16 v[{r}:{r+1}], v{VRD[win]} offset:{pos - base + 32*t + 4608*half}", ("A", f))
    for f in range(DIST): p.put(rd2(seq2("s"), f, 0)); p.put(rd2(seq2("s"), f, 1))
    p.wait(lg={"vote"}); e("v_or3_b32 v46, v44, v45, v46"); e("v_or_b32 v46, v46, v47"); e("v_readfirstlane_b32 s70, v46"); e("s_xor_b32 s71, s55, 1"); e("s_and_b32 s70, s70, s71"); e("s_cbranch_scc1 L_fallback")
    e("s_cmp_ge_u32 s6, 2"); e("s_cbranch_scc1 L_gpath")
    vm0, lg0, nst0 = list(p.vm), list(p.lg), nst[0]
    p.c("@save")
    psetup = ["s_lshr_b32 s70, s2, 5", "s_lshl_b32 s70, s70, 1", "s_and_b32 s66, s6, 1", "s_add_u32 s70, s70, s66", "s_lshl_b32 s67, s70, 4",
              "s_lshl_b32 s66, s3, 2", "s_add_u32 s70, s67, s66", "s_mul_i32 s70, s70, 9216",
              "s_lshr_b32 s66, s6, 1", "s_lshl_b32 s66, s66, 3", "s_add_u32 s66, s66, s7",
              f"s_mul_i32 s69, s66, {PART_SZ}", "s_add_u32 s70, s70, s69", f"s_add_u32 s70, s70, {PART_OFF}"] + srd_items(28, PWS, 36864, "s70", w3=False)
    psetup += ["s_add_u32 s70, s67, s66", "s_mul_i32 s70, s70, 9216", f"s_add_u32 s70, s70, {PART_OFF}"] + srd_items(32, PWS, 15 * PART_SZ + 9216, "s70", w3=False)
    psetup += ["s_lshr_b32 s70, s2, 5", "s_lshl_b32 s70, s70, 4", "s_add_u32 s70, s70, s66", "s_mul_i32 s70, s70, 18432", "s_add_u32 s69, s70, s43", f"v_lshrrev_b32 v39, 4, v{VL16}",
               "v_and_b32 v46, 15, v39", "v_mul_u32_u24 v46, 1152, v46", "v_add_u32 v46, s69, v46", "v_lshrrev_b32 v47, 4, v39", "v_lshlrev_b32 v47, 3, v47", "v_add_u32 v46, v46, v47",
               "s_lshl_b32 s70, s3, 10", f"v_add_u32 v80, s70, v{VL16}", "s_lshl_b32 s70, s3, 6", "v_add_u32 v83, s70, v46",
               "s_lshl_b32 s70, s3, 8", "s_add_u32 s70, s70, 8192", f"v_add_u32 v82, s70, v{VL16}", "s_lshl_b32 s70, s3, 3", "s_add_u32 s70, s70, 512", "v_add_u32 v85, s70, v46",
               f"v_add_u32 v86, 16384, v{MRED}"]
    psetup += srd_items(20, PX, 2359296, w3=False) + srd_items(24, POUT, 2359296, w3=False)
    def phase2(kind):
        P = 16 if kind == "s" else 18; T0 = P - TL; NG = P // 2
        fr2 = seq2(kind)
        mf = []; lastf = {}; firstq = {}
        for f, (q, im, t) in enumerate(fr2):
            a = AF + 4 * (f % RING); firstq.setdefault((q, im), len(mf))
            for rh in range(4):
                b = breg(q, rh)
                d = f"v[{FA+16*t+4*rh}:{FA+16*t+4*rh+3}]" if im == 0 else f"a[{16*t+4*rh}:{16*t+4*rh+3}]"
                m = dict(text=f"v_mfma_f32_16x16x32_bf16 {d}, v[{a}:{a+3}], a[{b}:{b+3}], {'0' if q == 0 else d}")
                if rh == 0:
                    if f % 2 == 0: m["lg"] = {("A", f), ("A", f + 1)}
                    if t == 0 and im == 0 and q >= 4: m["vm"] = {("B2", q)}
                mf.append(m)
            lastf[(q, im, t)] = len(mf) - 1
        G = lambda q: firstq[(q, 0)]
        qr = Q(); qv = Q(); qx = Q(); qs = Q(); qa = Q()
        for f in range(DIST, len(fr2)):
            g0 = 4 * (f - DIST); lo = g0 - 4
            if fr2[f][0] >= P - 2: lo = max(lo, G(T0))
            qr.add(rd2(fr2, f, 0), lo, max(lo, g0) + 1); qr.add(rd2(fr2, f, 1), lo, max(lo, g0) + 2)
        nq = 0; osp = o["o_sp"]
        for u in range(4):
            for rh in range(4):
                k = 4 * u + rh
                dl = 36 * u - 3 if kind == "s" else osp * k + 6
                if kind == "g": assert dl < 144 + 32 * u
                lo = -1 if kind == "s" or k < 7 else osp * (k - 6) + 4
                src = [16 * (2 * u + T) + 4 * rh + i for T in range(2) for i in range(4)]
                tt = [80 + 4 * (k % 8) + i for i in range(4)] + [80 + 4 * ((k + 1) % 8) + i for i in range(4)]
                for i in range(8): qx.add(f"v_accvgpr_read_b32 v{tt[i]}, a{src[i]}", lo, dl)
                for i in range(8): qx.add(f"v_mul_f32 v{tt[i]}, v{tt[i]}, v{40+rh}", lo, dl)
                for i in range(4): qx.add(f"v_cvt_pk_bf16_f32 v{tt[i]}, v{tt[2*i]}, v{tt[2*i+1]}", lo, dl)
                if kind == "s":
                    for i in range(4): qx.add(f"v_accvgpr_write_b32 a{breg(u, rh)+i}, v{tt[i]}", lo, dl)
                srcq = f"a[{breg(u, rh)}:{breg(u, rh)+3}]" if kind == "s" else f"v[{tt[0]}:{tt[3]}]"
                l2 = max(dl + 2, osp * k)
                qs.add(atom([f"s_mov_b32 s39, {4096*u}", ("V", f"buffer_store_dwordx4 {srcq}, v{VL16}, s[32:35], s39 offen offset:{1024*rh} {o.get('ofl', 'sc1')}", "ost0" if u < 2 else "ost")]), l2, l2 + 2)
                if k == o["o_pub0"]: qs.add(("B", {"ost0"}), l2 + 3, l2 + 3); qs.add(publish(3), l2 + 3, l2 + 5)
        gp = o["o_pub"]
        qs.add(("B", {"ost"}), gp, gp); qs.add(publish(7), gp, gp + 2)
        for x in psetup: qx.add(x, gp, G(T0) - 40)
        qa.add(("B", set()), 10**8, 10**8) if False else None
        if kind == "s":
            qv.add(poll_issue("f3", 3, MHO), o["f3"] - 8, o["f3"] - 6); qv.add(poll_check("f3", 3, MHO), o["f3"], o["f3"]); qv.add("s_mov_b32 s18, 65536", o["f3"], o["f3"])
            for k, x in enumerate(b2_ld(4) + b2_ld(5) + b2_ld(6)): qv.add(x, o["f3"] + k, o["f3"] + 2 + 2 * k)
        win = {2: (o["a2"], 4), 3: (o["a2"] + 54, 4), 4: (G(4) + 2, 5), 5: (G(5) + 2, 5)}
        for n in range(2, NG):
            g0, step = win[n] if n in win else (G(2 * (n - 4) + 2) + 2, 5)
            if n == 4: qa.add(("B", {("A2", 2)}), 264, 264)
            for k, x in enumerate(a_dma(n)): qa.add(x, g0 + step * k, g0 + step * k + 4)
        nxt = 7
        for q in range(4, T0 + 1):
            g0 = G(q)
            need = {("A2", (q + 1) // 2)} if q % 2 else set()
            if q == T0 - 1: need.add(("A2", NG - 2))
            if q == T0: need.add(("A2", NG - 1))
            qv.add(("B", need), g0 - 1, g0 - 1)
            if prof and f"q{q}" in prof: qv.add((lambda nm: lambda pp: stamp(nm))(f"q{q}"), g0, g0)
            if q == T0: break
            items = []
            if kind == "s" and q == 6: items.append(poll_issue("f7", 7, MHO))
            if kind == "s" and q == 7: items.append(poll_check("f7", 7, MHO))
            want = min(P, q + 4 + max(0, q - (T0 - 4)))
            want = min(want, q + 7)
            while nxt < want: items += b2_ld(nxt); nxt += 1
            sp = min(5, 60 // max(1, len(items)))
            for k, x in enumerate(items): qv.add(x, g0 + 4 + sp * k, g0 + 8 + sp * k)
        assert nxt == P
        for b in range(9):
            Tl = 2 * b + 1; lo = lastf[(P - 1, Tl // 9, Tl % 9)] + 4; hi = lo + 8 * TL - 6
            for rh in range(4):
                dst = 96 + 4 * (nq % 4); nq += 1
                for h in range(2):
                    im, t = divmod(2 * b + h, 9); r0 = FA + 16 * t + 4 * rh
                    if im == 1:
                        r0 = 88 + 4 * h
                        for i in range(4): qx.add(f"v_accvgpr_read_b32 v{r0+i}, a{16*t+4*rh+i}", lo, hi)
                    for i in range(2): qx.add(f"v_cvt_pk_bf16_f32 v{dst+2*h+i}, v{r0+2*i}, v{r0+2*i+1}", lo, hi)
                l2 = max(lo, G(T0) + 8 * TL + o["p_sp"] * (4 * b + rh)); hi = max(hi, l2 + 2)
                qx.add(atom([f"s_mov_b32 s68, {9216*rh + 1024*b}", ("V", f"buffer_store_dwordx4 v[{dst}:{dst+3}], v{VL16}, s[28:31], s68 offen {o.get('pfl', 'sc1')}", "pst0" if b < 4 else ("pst1" if b < 8 else "pst2"))]), l2, hi)
        n = len(mf); gb = G(T0) + (n - G(T0)) * o["pub4"] // 100; gc = G(T0) + (n - G(T0)) * o["chk4"] // 100
        qs.add(("B", {"pst0"}), gb, gb); qs.add(publish(4), gb, gb + 2)
        qs.add(poll_issue(("f", "s", 0), 4, MRED), n - 30, n - 26)
        qt = Q()
        if prof:
            for nm in prof:
                if nm[0] == "m": qt.add((lambda nm: lambda pp: stamp(nm))(nm), int(nm[1:]), int(nm[1:]))
            for nm in prof:
                if nm[0] == "t":
                    g = G(T0) + (n - G(T0)) * int(nm[1:]) // 100; qt.add((lambda nm: lambda pp: stamp(nm))(nm), g, g)
        schedule(p, mf, [qr, qv, qx, qs, qa, qt], stats=st)
    def publish_rest():
        p.wait(vm={"pst1"}); e("s_barrier"); p.put(publish(5))
        p.wait(vm={"pst2"}); e("s_barrier"); p.put(publish(6))
    phase2("s")
    vm_s = list(p.vm)
    e("s_branch L_p2_done")
    p.label("L_gpath")
    p.c("@restore")
    p.vm, p.lg, nst[0] = list(vm0), list(lg0), nst0
    phase2("g")
    assert vm_s == p.vm
    p.label("L_p2_done")
    stamp("p2")
    UV = [(80, 0, 83, 0), (80, 4096, 83, 256), (82, 0, 85, 0)]
    LB = {("s", 0): 112, ("s", 1): 144, ("g", 0): 176, ("s", 2): 208, ("g", 1): 112, ("g", 2): 144}
    SUM = [2, 10, 18]; XR = [240, 244, 248]
    def ld(ty, u):
        if u == 2: e("s_mov_b64 exec, 0xffff")
        for pi in range(8):
            r = LB[(ty, u)] + 4 * pi
            e(f"s_mov_b32 s39, {(pi + (8 if ty == 'g' else 0)) * PART_SZ + UV[u][1]}"); p.vmem(f"buffer_load_dwordx4 v[{r}:{r+3}], v{UV[u][0]}, s[32:35], s39 offen sc1", (ty, u, pi))
        if u == 2: e("s_mov_b64 exec, -1")
    def accum(ty, u, dst):
        for pi in range(8):
            p.wait(vm={(ty, u, pi)})
            for j in range(4):
                src = LB[(ty, u)] + 4 * pi + j
                if pi == 0: e(f"v_lshlrev_b32 v{dst+2*j}, 16, v{src}"); e(f"v_and_b32 v{dst+2*j+1}, 0xffff0000, v{src}")
                else: e(f"v_dot2c_f32_bf16 v{dst+2*j}, v{src}, v34"); e(f"v_dot2c_f32_bf16 v{dst+2*j+1}, v{src}, v35")
    def g_fin(u):
        G_, T, xr, S_ = 96, 104, XR[u], SUM[u]
        accum("g", u, G_)
        for j in range(8): e(f"v_exp_f32_e64 v{T+j}, -v{G_+j}")
        for j in range(8): e(f"v_add_f32 v{T+j}, 1.0, v{T+j}")
        for j in range(8): e(f"v_rcp_f32 v{T+j}, v{T+j}")
        for j in range(8): e(f"v_mul_f32 v{G_+j}, {LN2:#x}, v{G_+j}")
        for j in range(8): e(f"v_mul_f32 v{G_+j}, v{G_+j}, v{T+j}")
        p.wait(vm={"xl"})
        for j in range(4): e(f"v_lshlrev_b32 v{T+2*j}, 16, v{xr+j}"); e(f"v_and_b32 v{T+1+2*j}, 0xffff0000, v{xr+j}")
        for j in range(8): e(f"v_fmac_f32 v{T+j}, v{S_+j}, v{G_+j}")
        for j in range(4): e(f"v_cvt_pk_bf16_f32 v{xr+j}, v{T+2*j}, v{T+1+2*j}")
        if u == 2: e("s_mov_b64 exec, 0xffff")
        p.vmem(f"buffer_store_dwordx2 v[{xr}:{xr+1}], v{UV[u][2]}, s[24:27], 0 offen offset:{UV[u][3]}"); p.vmem(f"buffer_store_dwordx2 v[{xr+2}:{xr+3}], v{UV[u][2]}, s[24:27], 0 offen offset:{UV[u][3]+32}")
    PA_ = {"s": MRED, "g": 86}
    def pi_(ty, st_): p.put(poll_issue(("f", ty, st_), 4 + st_, PA_[ty]))
    def pc_(ty, st_): p.put(poll_check(("f", ty, st_), 4 + st_, PA_[ty]))
    pc_("s", 0); pi_("g", 0); ld("s", 0)
    p.wait(vm={"pst1"}); e("s_barrier"); p.put(publish(5))
    pc_("g", 0); pi_("s", 1); ld("g", 0)
    for u in range(3):
        if u == 2: e("s_mov_b64 exec, 0xffff")
        p.vmem(f"buffer_load_dwordx2 v[{XR[u]}:{XR[u]+1}], v{UV[u][2]}, s[20:23], 0 offen offset:{UV[u][3]}", "xl"); p.vmem(f"buffer_load_dwordx2 v[{XR[u]+2}:{XR[u]+3}], v{UV[u][2]}, s[20:23], 0 offen offset:{UV[u][3]+32}", "xl")
    e("s_mov_b64 exec, -1"); e("v_mov_b32 v34, 0x3f80"); e("v_mov_b32 v35, 0x3f800000")
    e("s_barrier"); p.put(publish(6))
    assert "pst2" not in p.vm
    stamp("sst")
    pc_("s", 1); pi_("s", 2); ld("s", 1)
    accum("s", 0, SUM[0])
    pc_("s", 2); pi_("g", 1); ld("s", 2)
    g_fin(0)
    pc_("g", 1); pi_("g", 2); ld("g", 1)
    stamp("f5")
    accum("s", 1, SUM[1])
    pc_("g", 2); ld("g", 2)
    accum("s", 2, SUM[2])
    g_fin(1); g_fin(2)
    if prof:
        p.waitall(); stamp("end")
        if o.get("dbg"):
            srd(p, 72, PDBG, 256); e("s_mov_b64 exec, 1"); e("v_mov_b32 v4, 0")
            for i in range(nst[0]):
                e(f"v_readlane_b32 s70, v0, {i}"); e("s_nop 1")
                if i == 0: e("s_not_b32 s70, s70")
                e("v_mov_b32 v5, s70"); e(f"buffer_atomic_umax v5, v4, s[72:75], 0 offen offset:{4+4*i}")
            e("s_endpgm")
        e("s_memrealtime s[94:95]"); e("s_waitcnt lgkmcnt(0)")
        srd(p, 72, PWS, 0x100000, add=0x8000000)
        e("s_lshl_b32 s70, s2, 2"); e("s_add_u32 s70, s70, s3"); e("s_lshl_b32 s70, s70, 6"); e("v_mov_b32 v4, s70"); e("s_mov_b64 exec, 1")
        for i in range(nst[0]): e(f"v_readlane_b32 s70, v0, {i}"); e("s_nop 1"); e(f"v_mov_b32 v5, s70"); e(f"buffer_store_dword v5, v4, s[72:75], 0 offen offset:{4*i}")
        e(f"v_mov_b32 v5, {nst[0]}"); e("buffer_store_dword v5, v4, s[72:75], 0 offen offset:56")
        e("v_mov_b32 v5, s94"); e("buffer_store_dword v5, v4, s[72:75], 0 offen offset:60")
    p.label("L_end"); e("s_endpgm")
    p.label("L_code_end")
    p.label("L_warm")
    e("s_getpc_b64 s[70:71]"); p.label("L_pc"); e(f"s_sub_u32 s72, s70, L_pc-{NAME}_kernel"); e("s_subb_u32 s73, s71, 0"); e("s_mov_b32 s74, CODE_BYTES"); e("s_mov_b32 s75, 0x20000")
    e("s_lshl_b32 s70, s6, 12"); e(f"v_lshlrev_b32 v46, 7, {L}")
    e("s_mov_b32 exec_hi, 0"); e("buffer_load_dword v73, v46, s[72:75], s70 offen"); e("s_mov_b32 exec_hi, -1")
    for x in wtouch_setup: e(x)
    for x in wtouch(0, 4, "s6"): p.put(x)
    e("s_barrier")
    for x in wtouch(128, 6, "s6"): p.put(x)
    e("s_branch L_ln_done")
    p.label("L_nonce_retry")
    e("s_sleep 1"); e("v_mov_b32 v45, 0"); e(f"buffer_load_dword v74, v45, s[{DBG}:{DBG+3}], 0 offen sc1"); e("s_waitcnt vmcnt(0)")
    e("v_readfirstlane_b32 s100, v74"); e("s_sub_u32 s54, s54, 1"); e("s_cbranch_scc1 L_nonce_ok"); e("s_cmp_eq_u32 s100, 0"); e("s_cbranch_scc1 L_nonce_retry"); e("s_branch L_nonce_ok")
    for k, (val, areg) in enumerate(retry):
        p.label(f"L_retry{k}")
        e("s_sleep 1"); e(f"buffer_load_dword v74, v{areg}, s[{DBG}:{DBG+3}], 0 offen offset:{128*val} sc1"); e("s_waitcnt vmcnt(0)")
        e("s_sub_u32 s54, s54, 1"); e(f"s_cbranch_scc1 L_back{k}")
        e("v_cmp_eq_u32 vcc, s100, v74"); e("s_cmp_eq_u64 vcc, -1"); e(f"s_cbranch_scc0 L_retry{k}"); e(f"s_branch L_back{k}")
    p.label("L_fallback")
    p.waitall(); e("s_mov_b32 s55, 1")
    for rh in range(4): e(f"v_mov_b32 v{38+rh}, 0xff800000")
    e("s_mov_b32 s39, 0")
    p.label("L_maxloop")
    e("s_barrier"); e("s_mov_b32 m0, s42"); e("s_nop 0")
    e(f"buffer_load_dwordx4 v{KV_}, s[20:23], s39 offen lds"); e(f"buffer_load_dwordx4 v{KV_+1}, s[20:23], s39 offen offset:1024 lds")
    e("s_waitcnt vmcnt(0)"); e("s_barrier")
    for i, x in enumerate(kfr(0)):
        p.put(areads(x, i % RING)[0]); p.waitall(vm=False)
        for t in amf(x, i % RING, czero=True): e(t)
    e("s_nop 7")
    for rh in range(4): rowmax(42, [SS[0] + 16 * T + 4 * rh + i for T in range(2) for i in range(4)]); e(f"v_max_f32 v{38+rh}, v{38+rh}, v42")
    e("s_add_u32 s39, s39, 8192"); e("s_cmp_lt_u32 s39, 131072"); e("s_cbranch_scc1 L_maxloop")
    xmax_negm()
    e("s_barrier")
    for w, b in [("K", 0), ("K", 1), ("V", 0), ("K", 2), ("V", 1), ("K", 3)]:
        for x in kv_dma(w, b): p.put(x)
    attention(False)
    p.waitall(); e("s_branch L_attn_done")
    print("sched", st)
    return p

def build(path, prof=None, opt=None):
    KN = NAME + "_kernel"
    p = gen(prof, opt)
    out, nn = check(p.L); print(path, "nops", nn, "lines", len(out))
    s = ("; @launch grid=(256,1,1) block=(256,1,1) lds=163840\n" + '.amdgcn_target "amdgcn-amd-amdhsa--gfx950"\n'
         + f".set CODE_BYTES, L_code_end - {KN}\n" + khead(KN) + "\n".join(out) + "\n" + kd(KN))
    open(path, "w").write(s)
PA = ["start", "pf", "xarr", "lnc", "lnst", "f1", "g1", "silu", "qep", "attn", "p2", "sst", "f5", "end"]
PB = ["attn", "q4", "q5", "q6", "q8", "q10", "p2", "sst", "f5", "end"]
PC = ["f1", "k0", "k1", "k3", "k6", "k9", "k12", "k15", "g1", "qep", "a0", "a3", "a6", "a9"]
PD = ["qep", "a0", "a2", "a4", "a6", "a8", "a10", "a11", "a12", "a13", "a14", "a15", "attn", "j2"]
RA = ["start", "f1", "g1", "qep", "attn", "q4", "t0", "p2", "sst", "f5", "end"]
PF = ["attn", "m0", "m72", "m144", "m216", "q4", "q5", "q6", "q8", "t0", "t50", "p2", "sst", "end"]
PC = ["f1", "k0", "k1", "k2", "k3", "k4", "k6", "k8", "k12", "k16", "g1", "silu", "qep", "a0"]
if __name__ == "__main__":
    build("m5.s")
    build("m5_ra.s", RA, dict(rt=True))
    build("m5_o_ra.s", RA, dict(rt=True, ofl=""))
    build("m5_op_ra.s", RA, dict(rt=True, ofl="", pfl=""))
    build("m5_pf.s", PF)
    build("m5_o_pf.s", PF, dict(ofl=""))
```

```python
import sys
sys.path.insert(0, "gen")
from asmlib import *
XNF_OFF = 0; HF_OFF = 0x400000; OF_OFF = 0x1800000; PART_OFF = 0x3000000; FLAGS_OFF = 0x7000000
PART_SZ = 2359296
LOG2E = 0x3fb8aa3b; LN2 = 0x3f317218
G1_BASE = 65536; G1_SLOT = 17408; G1_NS = 5
def g1pos(ks):
    k = ks % G1_NS
    return G1_BASE + k * G1_SLOT if k < 5 else (k - 5) * G1_SLOT
FLAG_LDS = 163824; LNB = 160768

def srd(p, d, lo, nrec, add=None):
    for x in srd_items(d, lo, nrec, add): p.put(x)
def atom(items):
    def f(pp):
        for x in items: pp.put(x)
    f.cost = len(items)
    return f
def srd_items(d, lo, nrec, add=None, w3=True):
    out = [f"s_mov_b32 s{d}, s{lo}", f"s_mov_b32 s{d+1}, s{lo+1}"] if add is None else [atom([f"s_add_u32 s{d}, s{lo}, {add}", f"s_addc_u32 s{d+1}, s{lo+1}, 0"])]
    out.append(f"s_mov_b32 s{d+2}, {nrec}")
    if w3: out.append(f"s_mov_b32 s{d+3}, 0x20000")
    return out

def gen(prof=None, opt=None):
    o = dict(pk=True, TL=6, hst_iters=5, f2=11, o_sp=10, o_pub0=11, o_pub=200, f3=230, a2=150, p_sp=10, pub4=60, chk4=85)
    o.update(opt or {})
    PART_OFF = o.get("part_off", 0x3000000)
    p = Prog(); e = p.e
    nst = [0]
    def stamp(name):
        if prof and name in prof:
            e("s_memrealtime s[94:95]" if o.get("rt") else "s_memtime s[94:95]"); e("s_waitcnt lgkmcnt(0)"); e(f"v_writelane_b32 v0, s94, {nst[0]}"); p.lg = []; nst[0] += 1
    PX, PK, PV, PWQ, PWO, PW1, PW2, POUT, PDBG, PWS = 44, 46, 48, 50, 52, 56, 58, 60, 62, 64
    WQB = [1, 5, 98]; W1B = [9, 10, 102]; WQV = 11; W1V = 13; VL16 = 16; KV_ = 17; VV_ = 19; KB = 21; VBs = 25; VL8 = 33; ONES = 34
    FLN = 76; FST = 77; MHO = 78; MRED = 79
    AF = 48; RING = 6; DBG = 96
    FA = 112; SS = [192, 224]; PP = [160, 176]; NEGM = 144; QF = 80; HS = 144
    L = "v39"
    retry = []
    wtouch_setup = [f"v_mul_u32_u24 v44, 7282, {L}", "v_lshrrev_b32 v44, 16, v44", "v_mul_u32_u24 v47, 9, v44", f"v_sub_u32 v43, {L}, v47", "v_mul_u32_u24 v44, 9216, v44",
                    "v_lshlrev_b32 v43, 7, v43", "v_add_u32 v93, v43, v44", f"v_lshrrev_b32 v44, 3, {L}", "v_lshlrev_b32 v44, 13, v44", f"v_and_b32 v43, 7, {L}", "v_lshlrev_b32 v43, 7, v43", "v_add_u32 v94, v43, v44"]
    def wtouch(row0, nrows, idx):
        return ([f"s_mul_i32 s70, {idx}, {nrows}", f"s_add_u32 s70, s70, {row0}", "s_mul_i32 s71, s70, 9216", "s_mul_i32 s74, s7, 1152", "s_add_u32 s71, s71, s74"]
                + srd_items(72, PW1, (nrows - 1) * 9216 + 1152, "s71") + [("V", "buffer_load_dword v73, v93, s[72:75], 0 offen", None)]
                + ["s_lshl_b32 s71, s70, 13", "s_lshl_b32 s74, s7, 10", "s_add_u32 s71, s71, s74"]
                + srd_items(72, PWQ, (nrows - 1) * 8192 + 1024, "s71", w3=False) + [("V", "buffer_load_dword v73, v94, s[72:75], 0 offen", None)])
    e("s_cmp_ge_u32 s2, 256"); e("s_cbranch_scc1 L_end")
    e("s_load_dwordx16 s[44:59], s[0:1], 0"); e("s_load_dwordx4 s[60:63], s[0:1], 64"); e("s_load_dwordx2 s[64:65], s[0:1], 80")
    e("v_lshrrev_b32 v38, 6, v0"); e("v_and_b32 v39, 63, v0"); e("v_readfirstlane_b32 s3, v38")
    stamp("start")
    e(f"v_and_b32 v40, 7, {L}"); e("s_lshl_b32 s6, s2, 3"); e("v_add_u32 v42, s6, v40"); e("v_mul_u32_u24 v42, 1152, v42")
    e(f"v_lshrrev_b32 v41, 3, {L}"); e("v_lshlrev_b32 v43, 4, v41"); e("v_add_u32 v42, v42, v43"); e("s_lshl_b32 s6, s3, 7"); e("v_add_u32 v42, s6, v42")
    e("s_mov_b32 s10, 2359296"); e("s_mov_b32 s11, 0x20000")
    e("s_waitcnt lgkmcnt(0)")
    e(f"s_mov_b32 s8, s{PX}"); e(f"s_mov_b32 s9, s{PX+1}")
    srd(p, DBG, PDBG, 256)
    e("v_mov_b32 v45, 0")
    e("s_lshr_b32 s6, s2, 3"); e("s_and_b32 s7, s2, 7")
    e("s_cmp_lg_u32 s3, 3"); e("s_cbranch_scc1 L_ln")
    e("s_cmp_lg_u32 s2, 0"); e("s_cbranch_scc1 L_warm")
    e("s_memrealtime s[70:71]"); e("s_waitcnt lgkmcnt(0)"); e("s_or_b32 s70, s70, 1"); e("v_mov_b32 v44, s70")
    e("s_mov_b64 exec, 1"); e(f"buffer_store_dword v44, v45, s[{DBG}:{DBG+3}], 0 offen sc1"); e("s_mov_b64 exec, -1"); e("s_branch L_warm")
    p.label("L_ln")
    for i in range(3): e(f"buffer_load_dwordx4 v[{80+4*i}:{83+4*i}], v42, s[8:11], 0 offen offset:{384*i}")
    p.vm = ["x"]
    stamp("pf")
    p.wait(vm={"x"})
    stamp("xarr")
    for i in range(12): e(f"v_lshlrev_b32 v{112+2*i}, 16, v{80+i}"); e(f"v_and_b32 v{113+2*i}, 0xffff0000, v{80+i}")
    e("v_add_f32 v42, v112, v113"); e("v_mul_f32 v43, v112, v112"); e("v_add_f32 v44, v114, v115"); e("v_mul_f32 v45, v113, v113")
    e("v_fmac_f32 v43, v114, v114"); e("v_fmac_f32 v45, v115, v115")
    for i in range(4, 24): e(f"v_add_f32 v{42+2*(i%2)}, v{42+2*(i%2)}, v{112+i}"); e(f"v_fmac_f32 v{43+2*(i%2)}, v{112+i}, v{112+i}")
    e("v_add_f32 v42, v42, v44"); e("v_add_f32 v43, v43, v45")
    for r_ in (42, 43): e(f"v_add_f32_dpp v{r_}, v{r_}, v{r_} row_ror:8 row_mask:0xf bank_mask:0xf")
    for sw in ("v_permlane16_swap_b32", "v_permlane32_swap_b32"):
        e("v_mov_b32 v44, v42"); e("v_mov_b32 v45, v43"); e(f"{sw} v42, v44"); e(f"{sw} v43, v45"); e("v_add_f32 v42, v42, v44"); e("v_add_f32 v43, v43, v45")
    e(f"v_lshlrev_b32 v46, 5, v40"); e(f"v_add_u32 v46, {LNB}, v46"); e("s_lshl_b32 s70, s3, 3"); e("v_add_u32 v47, s70, v46")
    p.lds("ds_write_b64 v47, v[42:43]")
    e("s_lshr_b32 s70, s2, 3"); e("s_mul_i32 s70, s70, 18"); e("s_lshl_b32 s71, s3, 1"); e("s_add_u32 s70, s70, s71"); e("s_lshl_b32 s70, s70, 12")
    e("s_bfe_u32 s71, s2, 0x20001"); e("s_lshl_b32 s71, s71, 10"); e("s_add_u32 s70, s70, s71"); e("s_and_b32 s71, s2, 1"); e("s_lshl_b32 s71, s71, 7"); e("s_add_u32 s70, s70, s71")
    e(f"v_lshrrev_b32 v38, 5, {L}"); e("v_lshlrev_b32 v38, 12, v38"); e("v_and_b32 v41, 3, v41"); e("v_lshlrev_b32 v41, 8, v41"); e("v_add_u32 v38, v38, v41")
    e("v_lshlrev_b32 v41, 4, v40"); e("v_add_u32 v38, v38, v41"); e("v_add_u32 v38, s70, v38")
    srd(p, 16, PWS, 2359296)
    p.waitall(vm=False); e("s_barrier")
    p.lds("ds_read_b128 v[144:147], v46"); p.lds("ds_read_b64 v[148:149], v46 offset:16")
    e("s_mov_b32 s70, 0x3ae38e39")
    p.waitall(vm=False)
    e("v_add_f32 v144, v144, v146"); e("v_add_f32 v145, v145, v147")
    e("v_add_f32 v144, v144, v148"); e("v_add_f32 v145, v145, v149")
    e("v_mul_f32 v47, s70, v144"); e("v_mul_f32 v45, s70, v145"); e("v_fma_f32 v45, -v47, v47, v45"); e("v_max_f32 v45, 0, v45")
    def rb(v): e(f"v_cvt_pk_bf16_f32 v{v}, v{v}, v{v}"); e(f"v_lshlrev_b32 v{v}, 16, v{v}")
    rb(45); rb(47); e("v_add_f32 v45, 0x3727c5ac, v45"); rb(45); e("v_sqrt_f32 v45, v45"); rb(45)
    e("v_rcp_f32 v45, v45"); e(f"v_mul_f32 v45, {LOG2E:#x}, v45"); e("v_mul_f32 v47, v47, v45")
    for i in range(24): e(f"v_fma_f32 v{112+i}, v{112+i}, v45, -v47")
    for i in range(12): e(f"v_cvt_pk_bf16_f32 v{80+i}, v{112+2*i}, v{113+2*i}")
    e("v_mov_b32 v44, 0"); p.vmem(f"buffer_load_dword v74, v44, s[{DBG}:{DBG+3}], 0 offen sc1")
    e("s_mov_b32 s70, 24576"); e("s_mov_b32 s71, 49152")
    p.vmem("buffer_store_dwordx4 v[80:83], v38, s[16:19], 0 offen sc1", "lnst"); p.vmem("buffer_store_dwordx4 v[84:87], v38, s[16:19], s70 offen sc1", "lnst")
    p.vmem("buffer_store_dwordx4 v[88:91], v38, s[16:19], s71 offen sc1", "lnst")
    p.label("L_ln_done")
    stamp("lnc")
    e("s_and_b32 s4, s2, 7"); e("s_lshl_b32 s4, s4, 2"); e("s_bfe_u32 s5, s2, 0x20003"); e("s_add_u32 s4, s4, s5")
    e("s_lshr_b32 s5, s2, 5"); e("s_lshl_b32 s5, s5, 2"); e("s_add_u32 s5, s5, s3")
    e(f"v_lshrrev_b32 v40, 4, {L}"); e(f"v_and_b32 v45, 15, {L}")
    e("s_mul_i32 s70, s3, 144"); e("s_and_b32 s43, s4, 1"); e("s_lshl_b32 s71, s43, 1")
    for i in range(3):
        e(f"s_add_u32 s36, s70, {64*i}"); e(f"v_add_u32 v41, s36, {L}")
        e("v_mul_u32_u24 v46, 3641, v41"); e("v_lshrrev_b32 v46, 16, v46"); e("v_mul_u32_u24 v47, 18, v46"); e("v_sub_u32 v41, v41, v47")
        e("v_add_u32 v41, s71, v41"); e("v_subrev_u32 v47, 18, v41"); e("v_min_u32 v41, v41, v47"); e("v_lshlrev_b32 v41, 4, v41")
        e("v_bfe_u32 v47, v46, 2, 2"); e("v_lshlrev_b32 v47, 3, v47"); e("v_and_b32 v72, 3, v46"); e("v_add_u32 v47, v47, v72")
        e("v_lshrrev_b32 v46, 4, v46"); e("v_lshlrev_b32 v46, 2, v46"); e("v_add_u32 v47, v47, v46"); e("v_mul_u32_u24 v47, 9216, v47")
        e(f"v_add_u32 v{W1V+i}, v47, v41")
        if i: e(f"v_subrev_u32 v{W1V+i}, {1024*i}, v{W1V+i}")
    e("s_and_b32 s36, s3, 1"); e("s_lshr_b32 s37, s3, 1")
    for a in range(2):
        e(f"s_lshl_b32 s70, s36, 4"); e(f"s_lshl_b32 s71, s37, 2"); e("s_add_u32 s70, s70, s71"); e(f"s_add_u32 s70, s70, {8*a}")
        e("v_add_u32 v46, s70, v40"); e("v_lshlrev_b32 v46, 13, v46")
        e(f"v_lshlrev_b32 v47, 1, v40"); e(f"v_xor_b32 v47, {8*a}, v47"); e("v_xor_b32 v47, v47, v45"); e("v_lshlrev_b32 v47, 4, v47")
        e(f"v_add_u32 v{WQV+a}, v46, v47")
        if a: e(f"v_subrev_u32 v{WQV+a}, 1024, v{WQV+a}")
        e("s_lshl_b32 s70, s3, 11"); e("v_lshlrev_b32 v46, 8, v40"); e("v_add_u32 v46, s70, v46"); e(f"v_add_u32 v{VV_+a}, v46, v47")
        e("s_lshl_b32 s71, s36, 3"); e(f"s_add_u32 s71, s71, {4*a}"); e("v_add_u32 v47, s71, v40"); e("v_xor_b32 v47, v47, v45"); e("v_lshlrev_b32 v47, 4, v47")
        e(f"v_add_u32 v{KV_+a}, v46, v47")
    e("s_lshl_b32 s70, s4, 8"); e("s_sub_u32 s71, 4718592, s70"); srd(p, 8, PWQ, "s71", add="s70")
    e("s_mul_i32 s70, s4, 288"); e("s_sub_u32 s71, 5308416, s70"); srd(p, 12, PW1, "s71", add="s70")
    e("s_mov_b32 s36, 0"); e("s_mov_b32 s37, 0"); e("s_mov_b32 s38, 0")
    e("s_lshl_b32 s42, s3, 11"); e("s_mov_b32 s40, s42"); e("s_mul_i32 s41, s3, 2304"); e("s_add_u32 s41, s41, 8192")
    e(f"v_mov_b32 v{FST}, 0x100000"); e("s_lshl_b32 s70, s2, 10"); e("v_mov_b32 v46, s70"); e("s_lshl_b32 s71, s3, 6"); e(f"v_add_u32 v47, s71, {L}"); e("v_cmp_eq_u32 vcc, 0, v47"); e(f"v_cndmask_b32 v{FST}, v{FST}, v46, vcc")
    e("s_and_b32 s70, s2, 0xe0"); e(f"v_and_b32 v45, 31, {L}"); e("v_add_u32 v45, s70, v45"); e(f"v_lshlrev_b32 v{FLN}, 10, v45")
    e("s_mov_b32 s55, 0"); e("s_mov_b32 s54, 0x400000")
    def w_dma(ks):
        sl = g1pos(ks); tok = ("W", ks)
        masked = atom(["s_mov_b64 exec, 0xffff", ("V", f"buffer_load_dwordx4 v{W1V+2}, s[12:15], s37 offen offset:2048 lds", tok), "s_mov_b64 exec, -1"])
        return [f"s_add_u32 m0, s41, {sl}",
                ("V", f"buffer_load_dwordx4 v{W1V}, s[12:15], s37 offen lds", tok),
                ("V", f"buffer_load_dwordx4 v{W1V+1}, s[12:15], s37 offen offset:1024 lds", tok),
                masked, "s_add_u32 s37, s37, 294912",
                f"s_add_u32 m0, s40, {sl}",
                ("V", f"buffer_load_dwordx4 v{WQV}, s[8:11], s36 offen lds", tok),
                ("V", f"buffer_load_dwordx4 v{WQV+1}, s[8:11], s36 offen offset:1024 lds", tok),
                "s_add_u32 s36, s36, 262144"]
    e("s_cmp_eq_u32 s3, 3"); e("s_cbranch_scc1 L_skip_lnw")
    p.wait(vm={"lnst"})
    e("v_readfirstlane_b32 s100, v74"); e("s_cmp_eq_u32 s100, 0"); e("s_cbranch_scc1 L_nonce_retry")
    p.label("L_nonce_ok")
    e(f"v_mov_b32 v45, {FLAG_LDS+4}"); e("ds_write_b32 v45, v74"); e("s_waitcnt lgkmcnt(0)")
    p.label("L_skip_lnw")
    srd(p, DBG, PWS, 262144, add=FLAGS_OFF)
    e("s_barrier")
    e(f"v_mov_b32 v45, {FLAG_LDS+4}"); p.lds("ds_read_b32 v47, v45", "nl")
    stamp("lnst")
    def publish(val):
        return atom(["v_mov_b32 v75, s100", ("V", f"buffer_store_dword v75, v{FST}, s[{DBG}:{DBG+3}], 0 offen offset:{128*val} sc1", None)])
    def poll_issue(tok, val, areg): return ("V", f"buffer_load_dword v74, v{areg}, s[{DBG}:{DBG+3}], 0 offen offset:{128*val} sc1", tok)
    def poll_check(tok, val, areg):
        k = len(retry); retry.append((val, areg))
        def f(pp):
            pp.wait(vm={tok}); pp.e("v_cmp_eq_u32 vcc, s100, v74"); pp.e("s_cmp_eq_u64 vcc, -1"); pp.e(f"s_cbranch_scc0 L_retry{k}"); pp.label(f"L_back{k}")
        f.cost = 4
        return f
    p.put(publish(1))
    for ks in range(4):
        for x in w_dma(ks): p.put(x)
    e(f"v_lshlrev_b32 v72, 7, {L}")
    p.wait(lg={"nl"}); e("v_readfirstlane_b32 s100, v47")
    late_b = []
    e(f"v_bfe_u32 v41, {L}, 2, 2"); e(f"v_and_b32 v42, 3, {L}"); e(f"v_bfe_u32 v43, {L}, 2, 3"); e(f"v_lshrrev_b32 v44, 2, {L}")
    e(f"v_lshlrev_b32 v{VL16}, 4, {L}")
    e("v_lshrrev_b32 v45, 1, v42"); e("v_xor_b32 v45, v45, v43"); e("v_lshlrev_b32 v45, 5, v45"); e("v_lshlrev_b32 v46, 8, v44"); e("v_add_u32 v45, v45, v46")
    e("v_and_b32 v46, 1, v42"); e("v_lshlrev_b32 v46, 4, v46"); e("v_add_u32 v45, v45, v46")
    for u in range(4):
        e(f"v_xor_b32 v46, {64*u}, v45"); e(f"v_add_u32 v{WQB[0]+u}, {G1_BASE}, v46"); e(f"v_add_u32 v{WQB[1]+u}, {G1_BASE+3*G1_SLOT}, v46"); late_b.append(f"v_subrev_u32 v{WQB[2]+u}, {G1_BASE}, v{WQB[0]+u}")
    e("v_mul_u32_u24 v45, 288, v44"); e("v_lshlrev_b32 v46, 3, v42"); e("v_add_u32 v45, v45, v46")
    e(f"v_add_u32 v{W1B[0]}, {G1_BASE+8192}, v45"); e(f"v_add_u32 v{W1B[1]}, {G1_BASE+3*G1_SLOT+8192}, v45"); late_b.append(f"v_subrev_u32 v{W1B[2]}, {G1_BASE}, v{W1B[0]}")
    e("s_mul_i32 s70, s5, 73728"); srd(p, 16, PWS, 73728, add="s70")
    p.put(poll_issue("f1", 1, FLN))
    late = []
    late += ["v_lshlrev_b32 v45, 5, v43", "v_lshlrev_b32 v46, 8, v44", "v_add_u32 v45, v45, v46", "v_lshlrev_b32 v46, 3, v42", "v_add_u32 v45, v45, v46", "v_add_u32 v45, 8192, v45"]
    late += [f"v_xor_b32 v{VBs+t}, {32*t}, v45" for t in range(8)]
    late += [f"v_and_b32 v45, 15, {L}", "v_xor_b32 v46, v40, v45", "v_lshlrev_b32 v46, 4, v46", "v_lshlrev_b32 v45, 8, v45", "v_add_u32 v45, v45, v46"]
    late += [f"v_xor_b32 v{KB+s}, {64*s}, v45" for s in range(4)]
    late += ["s_lshl_b32 s70, s43, 9", f"v_lshrrev_b32 v{VL8}, 1, v{VL16}", f"v_add_u32 v{VL8}, s70, v{VL8}"]
    late += [f"v_mov_b32 v{ONES+i}, 0x3f803f80" for i in range(4)]
    late += ["s_lshr_b32 s70, s4, 1", "s_lshl_b32 s70, s70, 19", "s_add_u32 s70, s70, 393216"] + srd_items(20, PK, 131072, "s76") + srd_items(24, PV, 131072, "s76")
    late += ["s_mul_i32 s70, s5, 144", "s_lshr_b32 s71, s4, 1", "s_mul_i32 s71, s71, 9", "s_add_u32 s70, s70, s71", "s_lshl_b32 s70, s70, 12", f"s_add_u32 s70, s70, {HF_OFF}"] + srd_items(28, PWS, 36864, "s76")
    late += ["s_lshl_b32 s70, s5, 7", "s_lshl_b32 s71, s4, 2", "s_add_u32 s70, s70, s71", "s_lshl_b32 s70, s70, 12", f"s_add_u32 s70, s70, {OF_OFF}"] + srd_items(32, PWS, 16384, "s76")
    late += ["s_mul_i32 s66, s43, 20480", "s_add_u32 s67, s66, 4096", "s_add_u32 s68, s66, 8192", "s_add_u32 s69, s66, 12288", "s_mov_b32 s101, 16384"]
    late += ["s_and_b32 s70, s2, 0xe7", f"v_and_b32 v45, 3, {L}", "v_lshlrev_b32 v45, 3, v45", "v_add_u32 v45, s70, v45", f"v_lshlrev_b32 v{MHO}, 10, v45"]
    late += ["s_and_b32 s70, s2, 0xe8", f"v_and_b32 v45, 7, {L}", "v_add_u32 v45, s70, v45", f"v_lshlrev_b32 v{MRED}, 10, v45"]
    nct = [0]
    def ctouch(step, va, vb):
        def f(pp):
            k = nct[0]; nct[0] += 1
            pp.e(f"s_cmp_lg_u32 s92, {step}"); pp.e(f"s_cbranch_scc1 L_ct{k}"); pp.c("@nocount")
            pp.e(f"buffer_load_dword v73, v{va}, s[72:75], 0 offen"); pp.c("@nocount"); pp.e(f"buffer_load_dword v73, v{vb}, s[88:91], 0 offen"); pp.label(f"L_ct{k}")
        f.cost = 2
        return f
    early = ["s_lshl_b32 s6, s6, 2", "s_add_u32 s6, s6, s3"] + [x.replace("v43", "v45").replace("v44", "v46") for x in wtouch_setup]
    early += ["s_lshl_b32 s70, s6, 1", "s_add_u32 s70, s70, 320", "s_mul_i32 s71, s70, 9216", "s_mul_i32 s74, s7, 1152", "s_add_u32 s71, s71, s74"] + srd_items(72, PW1, 10368, "s71")
    early += ["s_lshl_b32 s71, s70, 13", "s_lshl_b32 s74, s7, 10", "s_add_u32 s71, s71, s74"] + srd_items(88, PWQ, 9216, "s71") + ["s_lshr_b32 s92, s6, 5"]
    def early_w(step):
        return [ctouch(step, 93, 94)]
    early2 = ["s_lshr_b32 s70, s6, 6", "s_lshl_b32 s71, s7, 1", "s_add_u32 s70, s70, s71", "s_lshl_b32 s70, s70, 19", "s_and_b32 s71, s6, 63", "s_lshl_b32 s71, s71, 11",
              "s_add_u32 s70, s70, s71", "s_add_u32 s70, s70, 393216"] + srd_items(72, PK, 2048, "s70", w3=False) + srd_items(88, PV, 2048, "s70", w3=False) + ["s_and_b32 s92, s6, 3"]
    def early_kv(step):
        return [ctouch(step, 72, 72)]
    def ren(x):
        if isinstance(x, str): return x.replace("s70", "s76").replace("s71", "s77").replace("v45", "v95").replace("v46", "v96")
        return x
    late0 = [ren(x) for x in late]; late = []
    late += ["s_and_b32 s92, s6, 7",
             "s_mul_i32 s70, s7, 663552", "s_mul_i32 s71, s6, 5184", "s_add_u32 s70, s70, s71", atom([f"s_add_u32 s72, s{PW2}, s70", f"s_addc_u32 s73, s{PW2+1}, 0"]), "s_mov_b32 s75, 0x20000",
             "s_mul_i32 s70, s7, 589824", "s_mul_i32 s71, s6, 4608", "s_add_u32 s70, s70, s71", atom([f"s_add_u32 s88, s{PWO}, s70", f"s_addc_u32 s89, s{PWO+1}, 0"]), "s_mov_b32 s91, 0x20000", "s_mov_b32 s74, 5184", "s_mov_b32 s90, 4608"]
    def late2(step):
        return [ctouch(step, 72, 72)]
    VOFF = 1; VRD = [10, 11, 12]
    p2v = []
    for i in range(9):
        p2v += [f"v_add_u32 v95, {64*i}, {L}", "v_mul_u32_u24 v96, 3641, v95", "v_lshrrev_b32 v96, 16, v96", "v_mul_u32_u24 v97, 18, v96", "v_sub_u32 v97, v95, v97",
                "v_mul_u32_u24 v96, 1152, v96", "v_lshlrev_b32 v97, 4, v97", "v_add_u32 v96, v96, v97"] + ([f"v_subrev_u32 v96, {1024*(i%4)}, v96"] if i % 4 else []) + [f"v_accvgpr_write_b32 a{216+i}, v96"]
    p2v += ["v_mul_u32_u24 v95, 288, v44", "v_lshlrev_b32 v96, 3, v42", "v_add_u32 v95, v95, v96", "v_accvgpr_write_b32 a225, v95", "v_add_u32 v96, 65536, v95", "v_accvgpr_write_b32 a226, v96",
            f"v_add_u32 v96, {65536+55296}, v95", "v_accvgpr_write_b32 a227, v96", f"v_lshrrev_b32 v96, 1, v{VL16}", "v_accvgpr_write_b32 a228, v96"]
    p2s = ["s_bfe_u32 s6, s2, 0x20003", "s_and_b32 s43, s6, 1", "s_mul_i32 s43, s43, 576", "s_and_b32 s70, s3, 1", "s_mul_i32 s70, s70, 288", "s_add_u32 s70, s70, s43",
           "s_mov_b32 s71, 589824", f"s_mov_b32 s37, {OF_OFF}",
           atom(["s_cmp_ge_u32 s6, 2", f"s_cselect_b32 s8, s{PW2}, s{PWO}", f"s_cselect_b32 s9, s{PW2+1}, s{PWO+1}"]),
           atom(["s_cmp_ge_u32 s6, 2", "s_cselect_b32 s71, 663552, s71", "s_cselect_b32 s18, 73728, 0"]),
           atom(["s_cmp_ge_u32 s6, 2", "s_cselect_b32 s36, 18, 16", f"s_cselect_b32 s37, {HF_OFF}, s37"]), "s_lshr_b32 s38, s6, 1",
           "s_sub_u32 s10, s71, s70", "s_mul_i32 s71, s71, s7", "s_add_u32 s70, s70, s71", atom(["s_add_u32 s8, s8, s70", "s_addc_u32 s9, s9, 0"]),
           "s_lshl_b32 s70, s5, 3", "s_add_u32 s70, s70, s7", "s_mul_i32 s70, s70, s36", "s_lshl_b32 s70, s70, 12", "s_add_u32 s70, s70, s37",
           atom([f"s_add_u32 s16, s{PWS}, s70", f"s_addc_u32 s17, s{PWS+1}, 0"]), "s_lshr_b32 s37, s3, 1"]
    for c in range(4):
        p2s += [f"s_add_u32 s70, s6, {c}", "s_and_b32 s70, s70, 3", "s_add_u32 s71, s70, 1", "s_lshr_b32 s71, s71, 1", "s_mul_i32 s71, s71, s38",
                "s_lshl_b32 s70, s70, 2", "s_add_u32 s70, s70, s71", f"s_lshl_b32 s{84+c}, s70, 12", "s_add_u32 s70, s70, s37", f"s_mul_i32 s{88+c}, s70, 36864"]
    p2s += ["s_mul_i32 s93, s37, 331776", "s_add_u32 s93, s93, 147456", "s_mul_i32 s40, s3, 9216", f"s_add_u32 s41, s40, {65536+8*9216}", f"s_add_u32 s70, s40, {2*9216}",
            atom(["s_cmp_lt_u32 s3, 2", "s_cselect_b32 s41, s41, s70"])]
    p.put(poll_check("f1", 1, FLN))
    stamp("f1")
    def b_ld(ks):
        return [("V", f"buffer_load_dwordx4 a[{128+16*(ks%5)+4*rh}:{131+16*(ks%5)+4*rh}], v{VL16}, s[16:19], s38 offen offset:{1024*rh} sc1", ("B", ks)) for rh in range(4)] + ["s_add_u32 s38, s38, 4096"]
    def kv_dma(which, b):
        sl = (b % 4) * 16384 + (8192 if which == "V" else 0); vo, srd_ = (VV_, 24) if which == "V" else (KV_, 20)
        return [f"s_add_u32 m0, s42, {sl}", f"s_mov_b32 s39, {8192*b}",
                ("V", f"buffer_load_dwordx4 v{vo}, s[{srd_}:{srd_+3}], s39 offen lds", (which, b)),
                ("V", f"buffer_load_dwordx4 v{vo+1}, s[{srd_}:{srd_+3}], s39 offen offset:1024 lds", (which, b))]
    for ks in range(3):
        for x in b_ld(ks): p.put(x)
    e("s_barrier")
    fr = [(ks, t) for ks in range(18) for t in range(17)]
    DIST = 4
    def rd(f, half):
        ks, t = fr[f]; sl = ks % G1_NS; win = 0 if sl < 3 else (1 if sl < 5 else 2); off = (sl - [0, 3, 5][win]) * G1_SLOT
        r = AF + 4 * (f % RING) + 2 * half
        if t < 9: return ("L", f"ds_read_b64_tr_b16 v[{r}:{r+1}], v{W1B[win]} offset:{off + 32*t + 4608*half}", ("A", f))
        u, T = divmod(t - 9, 2)
        return ("L", f"ds_read_b64_tr_b16 v[{r}:{r+1}], v{WQB[win]+u} offset:{off + 8*T + 4096*half}", ("A", f))
    for f in range(DIST): p.put(rd(f, 0)); p.put(rd(f, 1))
    mf = []
    for f, (ks, t) in enumerate(fr):
        a = AF + 4 * (f % RING)
        for rh in range(4):
            d = f"v[{FA+16*t+4*rh}:{FA+16*t+4*rh+3}]" if t < 9 else f"a[{16*(t-9)+4*rh}:{16*(t-9)+4*rh+3}]"
            b = 128 + 16 * (ks % 5) + 4 * rh
            m = dict(text=f"v_mfma_f32_16x16x32_bf16 {d}, v[{a}:{a+3}], a[{b}:{b+3}], {'0' if ks == 0 else d}")
            if rh == 0:
                if f % 2 == 0: m["lg"] = {("A", f), ("A", f + 1)}
                if t == 0: m["vm"] = {("B", ks)}
            mf.append(m)
    qr = Q(); qv = Q(); qx = Q(); qx2 = Q()
    for f in range(DIST, len(fr)):
        g0 = 4 * (f - DIST); qr.add(rd(f, 0), g0 - 4, g0 + 1); qr.add(rd(f, 1), g0 - 4, g0 + 2)
    for x in early: qx.add(x, 0, 50)
    for k in range(4):
        for x in early_w(k): qx.add(x, 68 * k + 56, 68 * k + 66)
        for x in late0[k * len(late0) // 4:(k + 1) * len(late0) // 4]: qx2.add(x, 68 * k, 68 * (k + 2))
    for x in early2: qx.add(x, 68 * 4, 68 * 4 + 50)
    for k in range(4):
        for x in early_kv(k): qx.add(x, 68 * (4 + k) + 56, 68 * (4 + k) + 66)
    for x in late: qx.add(x, 68 * 8, 68 * 8 + 50)
    for k in range(8):
        for x in late2(k): qx.add(x, 68 * (8 + k) + 56, 68 * (8 + k) + 66)
    for x in p2v: qx2.add(x, 68 * 6, 68 * 12)
    for x in p2s: qx.add(x, 68 * 16, 68 * 18 - 8)
    kvpre = {14: [("K", 0), ("K", 1)], 15: [("V", 0), ("K", 2)], 16: [("V", 1), ("K", 3)]}; nw = 4
    for ks in range(18):
        g0 = 68 * ks
        if 0 < ks < 17: qv.add(("B", {("W", ks + 1)}), g0 - 1, g0 - 1)
        if prof and f"k{ks}" in prof: qv.add((lambda nm: lambda pp: stamp(nm))(f"k{ks}"), g0, g0)
        items = []
        if ks == 0: items += b_ld(3)
        if ks + 4 < 18: items += b_ld(ks + 4)
        wn = min(18, ks + 5)
        while nw < wn: items += w_dma(nw); nw += 1
        for w, b in kvpre.get(ks, []): items += kv_dma(w, b)
        sp = 4 if len(items) <= 14 else 2
        for k, x in enumerate(items): qv.add(x, g0 + 1 + sp * k, g0 + 3 + sp * k)
    st = []
    schedule(p, mf, [qr, qv, qx, qx2], stats=st)
    stamp("g1")
    e("s_nop 7")
    hst = []
    def silu8(regs, dst):
        n = len(regs); tt = [38 + i for i in range(n)]
        for i in range(n): e(f"v_exp_f32_e64 v{tt[i]}, -v{regs[i]}")
        if o["pk"]:
            for i in range(0, n, 2): e(f"v_pk_add_f32 v[{tt[i]}:{tt[i]+1}], v[{tt[i]}:{tt[i]+1}], 1.0 op_sel_hi:[1,0]")
        else:
            for i in range(n): e(f"v_add_f32 v{tt[i]}, 1.0, v{tt[i]}")
        for i in range(n): e(f"v_rcp_f32 v{tt[i]}, v{tt[i]}")
        if o["pk"]:
            for i in range(0, n, 2): e(f"v_pk_mul_f32 v[{regs[i]}:{regs[i]+1}], v[{regs[i]}:{regs[i]+1}], v[{tt[i]}:{tt[i]+1}]")
        else:
            for i in range(n): e(f"v_mul_f32 v{regs[i]}, v{regs[i]}, v{tt[i]}")
        for i in range(n // 2): e(f"v_cvt_pk_bf16_f32 v{tt[i]}, v{regs[2*i]}, v{regs[2*i+1]}")
        for i in range(n // 2): e(f"v_accvgpr_write_b32 a{dst+i}, v{tt[i]}")
    for pr in range(4):
        for rh in range(4):
            dst = HS + 16 * pr + 4 * rh
            silu8([FA + 32 * pr + 4 * rh + i for i in range(4)] + [FA + 32 * pr + 16 + 4 * rh + i for i in range(4)], dst)
            hst.append(("V", f"buffer_store_dwordx4 a[{dst}:{dst+3}], v{VL16}, s[28:31], s{66+pr} offen offset:{1024*rh} sc1", "hst"))
    for rp in range(2):
        dst = HS + 64 + 4 * rp
        silu8([FA + 128 + 8 * rp + i for i in range(8)], dst)
        for k in range(2): hst.append(("V", f"buffer_store_dwordx2 a[{dst+2*k}:{dst+2*k+1}], v{VL8}, s[28:31], s101 offen offset:{1024*(2*rp+k)} sc1", "hst"))
    stamp("silu")
    e("s_mov_b32 s70, 0x3db504f3"); e("s_mov_b32 s71, 0x3db504f3")
    for u in range(4):
        for rh in range(4):
            src = [16 * (2 * u + T) + 4 * rh + i for T in range(2) for i in range(4)]
            for i in range(8): e(f"v_accvgpr_read_b32 v{38+i}, a{src[i]}")
            if o["pk"]:
                for i in range(0, 8, 2): e(f"v_pk_mul_f32 v[{38+i}:{39+i}], v[{38+i}:{39+i}], s[70:71]")
            else:
                for i in range(8): e(f"v_mul_f32 v{38+i}, s70, v{38+i}")
            for i in range(4): e(f"v_cvt_pk_bf16_f32 v{QF+16*u+4*rh+i}, v{38+2*i}, v{39+2*i}")
    for i in range(13): e(f"v_accvgpr_read_b32 v{1+i}, a{216+i}")
    def slotpos(j):
        g, w = (j // 4) % 4, j % 4
        if g == 0: return 65536 + 9216 * w
        if g == 1: return 65536 + 9216 * (4 + w)
        if g == 2: return 9216 * w
        return 65536 + 9216 * (8 + w) if w < 2 else 9216 * (2 + w)
    def a_dma(n):
        g = n % 4
        c_, ub = (0, 2 * n) if n < 2 else (1 + (n - 2) % 3, 2 * ((n - 2) // 3))
        out = ["s_mov_b32 s36, s93" if n == 8 else f"s_add_u32 s36, s{88 + c_}, {36864 * ub}"]
        for i in range(9):
            if i % 4 == 0:
                out.append(f"s_add_u32 m0, s41, {1024*i}" if g == 3 else f"s_add_u32 m0, s40, {slotpos(4*g) + 1024*i}")
            out.append(("V", f"buffer_load_dwordx4 v{VOFF+i}, s[8:11], s36 offen offset:{1024*(i%4)} lds", ("A2", n)))
        return out
    def breg(pp_, rh): return 144 + 16 * (pp_ % 7) + 4 * rh
    def b2_ld(q):
        out = [f"s_mov_b32 s38, {4096 * (4 if q == 16 else 13)}" if q >= 16 else f"s_add_u32 s38, s{85 + (q//2 - 2) % 3}, {4096 * (2 * ((q//2 - 2) // 3) + q % 2)}"]
        for rh in range(4):
            b = breg(q, rh)
            if q >= 16: out += [("V", f"buffer_load_dwordx2 a[{b+2*h}:{b+2*h+1}], v13, s[16:19], s38 offen offset:{1024*rh+512*h} sc1", ("B2", q)) for h in range(2)]
            else: out.append(("V", f"buffer_load_dwordx4 a[{b}:{b+3}], v{VL16}, s[16:19], s38 offen offset:{1024*rh} sc1", ("B2", q)))
        return out
    stamp("qep")
    def kfr(b): return [("K", b, T, s) for T in range(2) for s in range(4)]
    def vfr(b): return [("V", b, t) for t in range(8)]
    def areads(x, slot):
        r = AF + 4 * slot; sl = (x[1] % 4) * 16384
        if x[0] == "K": return [("L", f"ds_read_b128 v[{r}:{r+3}], v{KB+x[3]} offset:{sl + 4096*x[2]}", x)]
        return [("L", f"ds_read_b64_tr_b16 v[{r+2*h}:{r+2*h+1}], v{VBs+x[2]} offset:{sl + 4096*h}", x) for h in range(2)]
    def amf(x, slot, czero=False):
        a = AF + 4 * slot; out = []
        for rh in range(4):
            if x[0] == "K":
                _, b, T, s = x; d = SS[b % 2] + 16 * T + 4 * rh; q = QF + 16 * s + 4 * rh
                c = (("0" if czero else f"v[{NEGM+4*rh}:{NEGM+4*rh+3}]") if s == 0 else f"v[{d}:{d+3}]")
                out.append(f"v_mfma_f32_16x16x32_bf16 v[{d}:{d+3}], v[{a}:{a+3}], v[{q}:{q+3}], {c}")
            else:
                _, b, t = x; d = 16 * t + 4 * rh; pb = PP[b % 2] + 4 * rh
                out.append(f"v_mfma_f32_16x16x32_bf16 a[{d}:{d+3}], v[{a}:{a+3}], v[{pb}:{pb+3}], {'0' if b == 0 else f'a[{d}:{d+3}]'}")
        return out
    def rowmax(dst, srcs):
        e(f"v_max3_f32 v{dst}, v{srcs[0]}, v{srcs[1]}, v{srcs[2]}")
        k = 3
        while k + 1 < len(srcs): e(f"v_max3_f32 v{dst}, v{dst}, v{srcs[k]}, v{srcs[k+1]}"); k += 2
        if k < len(srcs): e(f"v_max_f32 v{dst}, v{dst}, v{srcs[k]}")
    def xmax_negm():
        for sw in ("v_permlane32_swap_b32", "v_permlane16_swap_b32"):
            for rh in range(4): e(f"v_mov_b32 v{42+rh}, v{38+rh}")
            for rh in range(4): e(f"{sw} v{38+rh}, v{42+rh}")
            for rh in range(4): e(f"v_max_f32 v{38+rh}, v{38+rh}, v{42+rh}")
        for rh in range(4):
            for i in range(4): e(f"v_sub_f32 v{NEGM+4*rh+i}, 0, v{38+rh}")
    def attention(first_pass):
        p.wait(vm={("K", 1), ("V", 0)}); e("s_barrier")
        seq = kfr(0)
        for i, x in enumerate(seq[:RING]):
            for it in areads(x, i): p.put(it)
        for i, x in enumerate(seq):
            p.wait(lg={x})
            for k, t in enumerate(amf(x, i % RING, czero=True)):
                e(t)
                if first_pass and k == 1 and i < 4: p.put(hst.pop(0))
            if i + RING < 8:
                for it in areads(seq[i + RING], i % RING): p.put(it)
        seq = kfr(1)
        for i in range(1, 15): seq += vfr(i - 1) + kfr(i + 1)
        seq += vfr(14) + vfr(15)
        S0 = 8 % RING; DISTA = 4
        for i in range(DISTA):
            for it in areads(seq[i], (S0 + i) % RING): p.put(it)
        if first_pass:
            e("s_nop 4")
            for rh in range(4): rowmax(38 + rh, [SS[0] + 16 * T + 4 * rh + i for T in range(2) for i in range(4)])
            xmax_negm()
        else: e("s_nop 7")
        mf = []; first = {}; lastm = {}
        for i, x in enumerate(seq):
            key = (x[0], x[1]); first.setdefault(key, len(mf))
            for rh, t in enumerate(amf(x, (S0 + i) % RING)):
                m = dict(text=t)
                if rh == 0 and i % 2 == 0: m["lg"] = {x} | ({seq[i + 1]} if i + 1 < len(seq) else set())
                mf.append(m)
            lastm[x] = len(mf) - 1
            if x[0] == "V" and x[2] == (0 if x[1] == 15 else 3):
                for rh in range(4):
                    pb = PP[x[1] % 2] + 4 * rh; d = 128 + 4 * rh
                    mf.append(dict(text=f"v_mfma_f32_16x16x32_bf16 a[{d}:{d+3}], v[{ONES}:{ONES+3}], v[{pb}:{pb+3}], {'0' if x[1] == 0 else f'a[{d}:{d+3}]'}"))
        fstart = {i: lastm[x] - 3 for i, x in enumerate(seq)}
        qr = Q(); qv = Q(); qx = Q()
        for i in range(DISTA, len(seq)):
            lo = lastm[seq[i - RING]] if i >= RING else -1
            lo = max(lo, fstart[i - DISTA] - 3)
            for k, it in enumerate(areads(seq[i], (S0 + i) % RING)): qr.add(it, lo, fstart[i - DISTA] + 2 + k)
        for b in range(16):
            s = SS[b % 2]; dl = first[("V", b)] - 2
            for T in range(2):
                lo = -1 if b == 0 else lastm[("K", b, T, 3)] + 3
                lo_p = lastm[("V", b - 2, 7)] if b >= 2 else -1
                for rh in range(4):
                    rs = [s + 16 * T + 4 * rh + i for i in range(4)]
                    if b == 0:
                        for r_ in rs: qx.add(f"v_add_f32 v{r_}, v{r_}, v{NEGM+4*rh}", lo, dl)
                    for r_ in rs: qx.add(f"v_exp_f32 v{r_}, v{r_}", lo + rh, dl)
                    if rh > 0 or T > 0:
                        for it in pend: qx.add(it, max(lo, lo_p), dl)
                    pend = [f"v_cvt_pk_bf16_f32 v{PP[b%2]+4*rh+2*T+k}, v{rs[2*k]}, v{rs[2*k+1]}" for k in range(2)]
            for it in pend: qx.add(it, -1, dl)
        lo = lastm[("V", 15, 0)] + 4 + 6; hi = len(mf) - 6
        for rh in range(4): qx.add(f"v_accvgpr_read_b32 v{40+rh}, a{128+4*rh}", lo, hi)
        for x in ["v_add_f32 v38, v40, v41", "v_add_f32 v39, v42, v43", "s_mov_b32 s70, 0x4e800000", "v_add_f32 v38, v38, v39", "v_cmp_ngt_f32 vcc, s70, v38",
                  "s_lshl_b32 s70, s3, 2", f"s_add_u32 s70, s70, {FLAG_LDS-16}", "v_mov_b32 v45, s70", atom(["s_cmp_lg_u64 vcc, 0", "s_cselect_b32 s70, 1, 0"]), "v_mov_b32 v46, s70",
                  ("L", "ds_write_b32 v45, v46", "vw"), f"v_mov_b32 v45, {FLAG_LDS-16}"] + [f"v_rcp_f32 v{40+rh}, v{40+rh}" for rh in range(4)]: qx.add(x, lo, hi)
        HI = o["hst_iters"]
        for i in range(0, 16):
            g0 = (first[("V", i - 1)] if i > 0 else 0) - 1
            need = set()
            if i + 1 < 16: need.add(("K", i + 1))
            need.add(("V", i))
            if first_pass and i == HI + 1: need.add("hst")
            qv.add(("B", need), g0, g0)
            if first_pass and prof and f"a{i}" in prof: qv.add((lambda nm: lambda pp: stamp(nm))(f"a{i}"), g0, g0)
            items = []
            if first_pass and i == HI + 1: items.append(publish(2))
            if i + 2 < 16: items += kv_dma("V", i + 2)
            if first_pass and i < HI:
                for _ in range(-(-len(hst) // (HI - i))): items.append(hst.pop(0))
            if i + 4 < 16: items += kv_dma("K", i + 4)
            if first_pass:
                if i == o["f2"] - 1: items.append(poll_issue("f2", 2, MHO))
                if i == o["f2"]: items += [poll_check("f2", 2, MHO)]
                if i == 12: items += a_dma(0)
                if i == 13: items += a_dma(1)
                if i == 14: items += b2_ld(4) + b2_ld(5)
                if i == 15: items += b2_ld(6)
            sp = 3 if len(items) > 11 else 5
            for k, x in enumerate(items): qv.add(x, g0 + 2 + (sp - 1) * k, min(g0 + 8 + sp * k, len(mf) - 2))
        schedule(p, mf, [qr, qv, qx], stats=st)
    attention(True)
    p.label("L_attn_done")
    stamp("attn")
    p.wait(lg={"vw"}, vm={("A2", 1)}); e("s_barrier")
    p.lds("ds_read_b128 v[44:47], v45", "vote")
    TL = o["TL"]; STG = [(64, 0), (48, 256), (32, 448)]
    def seq2(kind):
        P = 16 if kind == "s" else 18; T0 = P - TL
        return ([(q, 0, t) for q in range(4) for t in range(9)] + [(q, 1, t) for t in range(9) for q in range(4)]
                + [(q, im, t) for q in range(4, T0) for im in range(2) for t in range(9)] + [(q, im, t) for im in range(2) for t in range(9) for q in range(T0, P)])
    def rd2(fr2, f, half):
        q, im, t = fr2[f]; pos = slotpos(2 * q + im); win = 0 if pos < 65536 else (1 if pos < 65536 + 55296 else 2)
        base = [0, 65536, 65536 + 55296][win]
        r = AF + 4 * (f % RING) + 2 * half
        return ("L", f"ds_read_b64_tr_b16 v[{r}:{r+1}], v{VRD[win]} offset:{pos - base + 32*t + 4608*half}", ("A", f))
    for f in range(DIST): p.put(rd2(seq2("s"), f, 0)); p.put(rd2(seq2("s"), f, 1))
    p.wait(lg={"vote"}); e("v_or3_b32 v46, v44, v45, v46"); e("v_or_b32 v46, v46, v47"); e("v_readfirstlane_b32 s70, v46"); e("s_xor_b32 s71, s55, 1"); e("s_and_b32 s70, s70, s71"); e("s_cbranch_scc1 L_fallback")
    e("s_cmp_ge_u32 s6, 2"); e("s_cbranch_scc1 L_gpath")
    vm0, lg0, nst0 = list(p.vm), list(p.lg), nst[0]
    p.c("@save")
    psetup = ["s_lshr_b32 s70, s2, 5", "s_lshl_b32 s70, s70, 1", "s_and_b32 s66, s6, 1", "s_add_u32 s70, s70, s66", "s_lshl_b32 s67, s70, 4",
              "s_lshl_b32 s66, s3, 2", "s_add_u32 s70, s67, s66", "s_mul_i32 s70, s70, 9216",
              "s_lshr_b32 s66, s6, 1", "s_lshl_b32 s66, s66, 3", "s_add_u32 s66, s66, s7",
              f"s_mul_i32 s69, s66, {PART_SZ}", "s_add_u32 s70, s70, s69", f"s_add_u32 s70, s70, {PART_OFF}"] + srd_items(28, PWS, 36864, "s70", w3=False)
    psetup += ["s_add_u32 s70, s67, s66", "s_mul_i32 s70, s70, 9216", f"s_add_u32 s70, s70, {PART_OFF}"] + srd_items(32, PWS, 15 * PART_SZ + 9216, "s70", w3=False)
    psetup += ["s_lshr_b32 s70, s2, 5", "s_lshl_b32 s70, s70, 4", "s_add_u32 s70, s70, s66", "s_mul_i32 s70, s70, 18432", "s_add_u32 s69, s70, s43", f"v_lshrrev_b32 v39, 4, v{VL16}",
               "v_and_b32 v46, 15, v39", "v_mul_u32_u24 v46, 1152, v46", "v_add_u32 v46, s69, v46", "v_lshrrev_b32 v47, 4, v39", "v_lshlrev_b32 v47, 3, v47", "v_add_u32 v46, v46, v47",
               "s_lshl_b32 s70, s3, 10", f"v_add_u32 v80, s70, v{VL16}", "s_lshl_b32 s70, s3, 6", "v_add_u32 v83, s70, v46",
               "s_lshl_b32 s70, s3, 8", "s_add_u32 s70, s70, 8192", f"v_add_u32 v82, s70, v{VL16}", "s_lshl_b32 s70, s3, 3", "s_add_u32 s70, s70, 512", "v_add_u32 v85, s70, v46",
               f"v_add_u32 v86, 16384, v{MRED}"]
    psetup += srd_items(20, PX, 2359296, w3=False) + srd_items(24, POUT, 2359296, w3=False)
    def phase2(kind):
        P = 16 if kind == "s" else 18; T0 = P - TL; NG = P // 2
        fr2 = seq2(kind)
        mf = []; lastf = {}; firstq = {}
        for f, (q, im, t) in enumerate(fr2):
            a = AF + 4 * (f % RING); firstq.setdefault((q, im), len(mf))
            for rh in range(4):
                b = breg(q, rh)
                d = f"v[{FA+16*t+4*rh}:{FA+16*t+4*rh+3}]" if im == 0 else f"a[{16*t+4*rh}:{16*t+4*rh+3}]"
                m = dict(text=f"v_mfma_f32_16x16x32_bf16 {d}, v[{a}:{a+3}], a[{b}:{b+3}], {'0' if q == 0 else d}")
                if rh == 0:
                    if f % 2 == 0: m["lg"] = {("A", f), ("A", f + 1)}
                    if t == 0 and im == 0 and q >= 4: m["vm"] = {("B2", q)}
                mf.append(m)
            lastf[(q, im, t)] = len(mf) - 1
        G = lambda q: firstq[(q, 0)]
        qr = Q(); qv = Q(); qx = Q(); qs = Q(); qa = Q()
        for f in range(DIST, len(fr2)):
            g0 = 4 * (f - DIST); lo = g0 - 4
            if fr2[f][0] >= P - 2: lo = max(lo, G(T0))
            qr.add(rd2(fr2, f, 0), lo, max(lo, g0) + 1); qr.add(rd2(fr2, f, 1), lo, max(lo, g0) + 2)
        nq = 0; osp = o["o_sp"]
        for u in range(4):
            for rh in range(4):
                k = 4 * u + rh
                dl = 36 * u - 3 if kind == "s" else osp * k + 6
                if kind == "g": assert dl < 144 + 32 * u
                lo = -1 if kind == "s" or k < 7 else osp * (k - 6) + 4
                src = [16 * (2 * u + T) + 4 * rh + i for T in range(2) for i in range(4)]
                tt = [80 + 4 * (k % 8) + i for i in range(4)] + [80 + 4 * ((k + 1) % 8) + i for i in range(4)]
                for i in range(8): qx.add(f"v_accvgpr_read_b32 v{tt[i]}, a{src[i]}", lo, dl)
                for i in range(8): qx.add(f"v_mul_f32 v{tt[i]}, v{tt[i]}, v{40+rh}", lo, dl)
                for i in range(4): qx.add(f"v_cvt_pk_bf16_f32 v{tt[i]}, v{tt[2*i]}, v{tt[2*i+1]}", lo, dl)
                if kind == "s":
                    for i in range(4): qx.add(f"v_accvgpr_write_b32 a{breg(u, rh)+i}, v{tt[i]}", lo, dl)
                srcq = f"a[{breg(u, rh)}:{breg(u, rh)+3}]" if kind == "s" else f"v[{tt[0]}:{tt[3]}]"
                l2 = max(dl + 2, osp * k)
                qs.add(atom([f"s_mov_b32 s39, {4096*u}", ("V", f"buffer_store_dwordx4 {srcq}, v{VL16}, s[32:35], s39 offen offset:{1024*rh} {o.get('ofl', 'sc1')}", "ost0" if u < 2 else "ost")]), l2, l2 + 2)
                if k == o["o_pub0"]: qs.add(("B", {"ost0"}), l2 + 3, l2 + 3); qs.add(publish(3), l2 + 3, l2 + 5)
        gp = o["o_pub"]
        qs.add(("B", {"ost"}), gp, gp); qs.add(publish(7), gp, gp + 2)
        for x in psetup: qx.add(x, gp, G(T0) - 40)
        qa.add(("B", set()), 10**8, 10**8) if False else None
        if kind == "s":
            qv.add(poll_issue("f3", 3, MHO), o["f3"] - 8, o["f3"] - 6); qv.add(poll_check("f3", 3, MHO), o["f3"], o["f3"]); qv.add("s_mov_b32 s18, 65536", o["f3"], o["f3"])
            for k, x in enumerate(b2_ld(4) + b2_ld(5) + b2_ld(6)): qv.add(x, o["f3"] + k, o["f3"] + 2 + 2 * k)
        win = {2: (o["a2"], 4), 3: (o["a2"] + 54, 4), 4: (G(4) + 2, 5), 5: (G(5) + 2, 5)}
        for n in range(2, NG):
            g0, step = win[n] if n in win else (G(2 * (n - 4) + 2) + 2, 5)
            if n == 4: qa.add(("B", {("A2", 2)}), 264, 264)
            for k, x in enumerate(a_dma(n)): qa.add(x, g0 + step * k, g0 + step * k + 4)
        nxt = 7
        for q in range(4, T0 + 1):
            g0 = G(q)
            need = {("A2", (q + 1) // 2)} if q % 2 else set()
            if q == T0 - 1: need.add(("A2", NG - 2))
            if q == T0: need.add(("A2", NG - 1))
            qv.add(("B", need), g0 - 1, g0 - 1)
            if prof and f"q{q}" in prof: qv.add((lambda nm: lambda pp: stamp(nm))(f"q{q}"), g0, g0)
            if q == T0: break
            items = []
            if kind == "s" and q == 6: items.append(poll_issue("f7", 7, MHO))
            if kind == "s" and q == 7: items.append(poll_check("f7", 7, MHO))
            want = min(P, q + 4 + max(0, q - (T0 - 4)))
            want = min(want, q + 7)
            while nxt < want: items += b2_ld(nxt); nxt += 1
            sp = min(5, 60 // max(1, len(items)))
            for k, x in enumerate(items): qv.add(x, g0 + 4 + sp * k, g0 + 8 + sp * k)
        assert nxt == P
        for b in range(9):
            Tl = 2 * b + 1; lo = lastf[(P - 1, Tl // 9, Tl % 9)] + 4; hi = lo + 8 * TL - 6
            for rh in range(4):
                dst = 96 + 4 * (nq % 4); nq += 1
                for h in range(2):
                    im, t = divmod(2 * b + h, 9); r0 = FA + 16 * t + 4 * rh
                    if im == 1:
                        r0 = 88 + 4 * h
                        for i in range(4): qx.add(f"v_accvgpr_read_b32 v{r0+i}, a{16*t+4*rh+i}", lo, hi)
                    for i in range(2): qx.add(f"v_cvt_pk_bf16_f32 v{dst+2*h+i}, v{r0+2*i}, v{r0+2*i+1}", lo, hi)
                l2 = max(lo, G(T0) + 8 * TL + o["p_sp"] * (4 * b + rh)); hi = max(hi, l2 + 2)
                qx.add(atom([f"s_mov_b32 s68, {9216*rh + 1024*b}", ("V", f"buffer_store_dwordx4 v[{dst}:{dst+3}], v{VL16}, s[28:31], s68 offen {o.get('pfl', 'sc1')}", "pst0" if b < 4 else ("pst1" if b < 8 else "pst2"))]), l2, hi)
        n = len(mf); gb = G(T0) + (n - G(T0)) * o["pub4"] // 100; gc = G(T0) + (n - G(T0)) * o["chk4"] // 100
        qs.add(("B", {"pst0"}), gb, gb); qs.add(publish(4), gb, gb + 2)
        qs.add(poll_issue(("f", "s", 0), 4, MRED), n - 30, n - 26)
        qt = Q()
        if prof:
            for nm in prof:
                if nm[0] == "m": qt.add((lambda nm: lambda pp: stamp(nm))(nm), int(nm[1:]), int(nm[1:]))
            for nm in prof:
                if nm[0] == "t":
                    g = G(T0) + (n - G(T0)) * int(nm[1:]) // 100; qt.add((lambda nm: lambda pp: stamp(nm))(nm), g, g)
        schedule(p, mf, [qr, qv, qx, qs, qa, qt], stats=st)
    def publish_rest():
        p.wait(vm={"pst1"}); e("s_barrier"); p.put(publish(5))
        p.wait(vm={"pst2"}); e("s_barrier"); p.put(publish(6))
    phase2("s")
    vm_s = list(p.vm)
    e("s_branch L_p2_done")
    p.label("L_gpath")
    p.c("@restore")
    p.vm, p.lg, nst[0] = list(vm0), list(lg0), nst0
    phase2("g")
    assert vm_s == p.vm
    p.label("L_p2_done")
    stamp("p2")
    UV = [(80, 0, 83, 0), (80, 4096, 83, 256), (82, 0, 85, 0)]
    LB = {("s", 0): 112, ("s", 1): 144, ("g", 0): 176, ("s", 2): 208, ("g", 1): 112, ("g", 2): 144}
    SUM = [2, 10, 18]; XR = [240, 244, 248]
    def ld(ty, u):
        if u == 2: e("s_mov_b64 exec, 0xffff")
        for pi in range(8):
            r = LB[(ty, u)] + 4 * pi
            e(f"s_mov_b32 s39, {(pi + (8 if ty == 'g' else 0)) * PART_SZ + UV[u][1]}"); p.vmem(f"buffer_load_dwordx4 v[{r}:{r+3}], v{UV[u][0]}, s[32:35], s39 offen sc1", (ty, u, pi))
        if u == 2: e("s_mov_b64 exec, -1")
    def accum(ty, u, dst):
        for pi in range(8):
            p.wait(vm={(ty, u, pi)})
            for j in range(4):
                src = LB[(ty, u)] + 4 * pi + j
                if pi == 0: e(f"v_lshlrev_b32 v{dst+2*j}, 16, v{src}"); e(f"v_and_b32 v{dst+2*j+1}, 0xffff0000, v{src}")
                else: e(f"v_dot2c_f32_bf16 v{dst+2*j}, v{src}, v34"); e(f"v_dot2c_f32_bf16 v{dst+2*j+1}, v{src}, v35")
    def g_fin(u):
        G_, T, xr, S_ = 96, 104, XR[u], SUM[u]
        accum("g", u, G_)
        for j in range(8): e(f"v_exp_f32_e64 v{T+j}, -v{G_+j}")
        for j in range(8): e(f"v_add_f32 v{T+j}, 1.0, v{T+j}")
        for j in range(8): e(f"v_rcp_f32 v{T+j}, v{T+j}")
        for j in range(8): e(f"v_mul_f32 v{G_+j}, {LN2:#x}, v{G_+j}")
        for j in range(8): e(f"v_mul_f32 v{G_+j}, v{G_+j}, v{T+j}")
        p.wait(vm={"xl"})
        for j in range(4): e(f"v_lshlrev_b32 v{T+2*j}, 16, v{xr+j}"); e(f"v_and_b32 v{T+1+2*j}, 0xffff0000, v{xr+j}")
        for j in range(8): e(f"v_fmac_f32 v{T+j}, v{S_+j}, v{G_+j}")
        for j in range(4): e(f"v_cvt_pk_bf16_f32 v{xr+j}, v{T+2*j}, v{T+1+2*j}")
        if u == 2: e("s_mov_b64 exec, 0xffff")
        p.vmem(f"buffer_store_dwordx2 v[{xr}:{xr+1}], v{UV[u][2]}, s[24:27], 0 offen offset:{UV[u][3]} {o.get('outfl', '')}"); p.vmem(f"buffer_store_dwordx2 v[{xr+2}:{xr+3}], v{UV[u][2]}, s[24:27], 0 offen offset:{UV[u][3]+32} {o.get('outfl', '')}")
    PA_ = {"s": MRED, "g": 86}
    def pi_(ty, st_): p.put(poll_issue(("f", ty, st_), 4 + st_, PA_[ty]))
    def pc_(ty, st_): p.put(poll_check(("f", ty, st_), 4 + st_, PA_[ty]))
    def xl():
        for u in range(3):
            if u == 2: e("s_mov_b64 exec, 0xffff")
            p.vmem(f"buffer_load_dwordx2 v[{XR[u]}:{XR[u]+1}], v{UV[u][2]}, s[20:23], 0 offen offset:{UV[u][3]}", "xl"); p.vmem(f"buffer_load_dwordx2 v[{XR[u]+2}:{XR[u]+3}], v{UV[u][2]}, s[20:23], 0 offen offset:{UV[u][3]+32}", "xl")
        e("s_mov_b64 exec, -1"); e("v_mov_b32 v34, 0x3f80"); e("v_mov_b32 v35, 0x3f800000")
    if o.get("pubfirst"):
        p.wait(vm={"pst1"}); e("s_barrier"); p.put(publish(5))
        p.wait(vm={"pst2"}); e("s_barrier"); p.put(publish(6))
        stamp("sst")
        pc_("s", 0); pi_("g", 0); ld("s", 0); pc_("g", 0); pi_("s", 1); ld("g", 0); xl()
    else:
        pc_("s", 0); pi_("g", 0); ld("s", 0)
        p.wait(vm={"pst1"}); e("s_barrier"); p.put(publish(5))
        pc_("g", 0); pi_("s", 1); ld("g", 0)
        xl()
        e("s_barrier"); p.put(publish(6))
        assert "pst2" not in p.vm
        stamp("sst")
    pc_("s", 1); pi_("s", 2); ld("s", 1)
    accum("s", 0, SUM[0])
    pc_("s", 2); pi_("g", 1); ld("s", 2)
    g_fin(0)
    pc_("g", 1); pi_("g", 2); ld("g", 1)
    stamp("f5")
    accum("s", 1, SUM[1])
    pc_("g", 2); ld("g", 2)
    accum("s", 2, SUM[2])
    g_fin(1); g_fin(2)
    if prof:
        p.waitall(); stamp("end")
        if o.get("dbg"):
            srd(p, 72, PDBG, 256); e("s_mov_b64 exec, 1"); e("v_mov_b32 v4, 0")
            for i in range(nst[0]):
                e(f"v_readlane_b32 s70, v0, {i}"); e("s_nop 1")
                if i == 0: e("s_not_b32 s70, s70")
                e("v_mov_b32 v5, s70"); e(f"buffer_atomic_umax v5, v4, s[72:75], 0 offen offset:{4+4*i}")
            e("s_endpgm")
        e("s_memrealtime s[94:95]"); e("s_waitcnt lgkmcnt(0)")
        srd(p, 72, PWS, 0x100000, add=0x8000000)
        e("s_lshl_b32 s70, s2, 2"); e("s_add_u32 s70, s70, s3"); e("s_lshl_b32 s70, s70, 6"); e("v_mov_b32 v4, s70"); e("s_mov_b64 exec, 1")
        for i in range(nst[0]): e(f"v_readlane_b32 s70, v0, {i}"); e("s_nop 1"); e(f"v_mov_b32 v5, s70"); e(f"buffer_store_dword v5, v4, s[72:75], 0 offen offset:{4*i}")
        e(f"v_mov_b32 v5, {nst[0]}"); e("buffer_store_dword v5, v4, s[72:75], 0 offen offset:56")
        e("v_mov_b32 v5, s94"); e("buffer_store_dword v5, v4, s[72:75], 0 offen offset:60")
    p.label("L_end"); e("s_endpgm")
    p.label("L_code_end")
    p.label("L_warm")
    e("s_getpc_b64 s[70:71]"); p.label("L_pc"); e(f"s_sub_u32 s72, s70, L_pc-{NAME}_kernel"); e("s_subb_u32 s73, s71, 0"); e("s_mov_b32 s74, CODE_BYTES"); e("s_mov_b32 s75, 0x20000")
    e("s_lshl_b32 s70, s6, 12"); e(f"v_lshlrev_b32 v46, 7, {L}")
    e("s_mov_b32 exec_hi, 0"); e("buffer_load_dword v73, v46, s[72:75], s70 offen"); e("s_mov_b32 exec_hi, -1")
    for x in wtouch_setup: e(x)
    for x in wtouch(0, 4, "s6"): p.put(x)
    e("s_barrier")
    for x in wtouch(128, 6, "s6"): p.put(x)
    e("s_branch L_ln_done")
    p.label("L_nonce_retry")
    e("s_sleep 1"); e("v_mov_b32 v45, 0"); e(f"buffer_load_dword v74, v45, s[{DBG}:{DBG+3}], 0 offen sc1"); e("s_waitcnt vmcnt(0)")
    e("v_readfirstlane_b32 s100, v74"); e("s_sub_u32 s54, s54, 1"); e("s_cbranch_scc1 L_nonce_ok"); e("s_cmp_eq_u32 s100, 0"); e("s_cbranch_scc1 L_nonce_retry"); e("s_branch L_nonce_ok")
    for k, (val, areg) in enumerate(retry):
        p.label(f"L_retry{k}")
        e("s_sleep 1"); e(f"buffer_load_dword v74, v{areg}, s[{DBG}:{DBG+3}], 0 offen offset:{128*val} sc1"); e("s_waitcnt vmcnt(0)")
        e("s_sub_u32 s54, s54, 1"); e(f"s_cbranch_scc1 L_back{k}")
        e("v_cmp_eq_u32 vcc, s100, v74"); e("s_cmp_eq_u64 vcc, -1"); e(f"s_cbranch_scc0 L_retry{k}"); e(f"s_branch L_back{k}")
    p.label("L_fallback")
    p.waitall(); e("s_mov_b32 s55, 1")
    for rh in range(4): e(f"v_mov_b32 v{38+rh}, 0xff800000")
    e("s_mov_b32 s39, 0")
    p.label("L_maxloop")
    e("s_barrier"); e("s_mov_b32 m0, s42"); e("s_nop 0")
    e(f"buffer_load_dwordx4 v{KV_}, s[20:23], s39 offen lds"); e(f"buffer_load_dwordx4 v{KV_+1}, s[20:23], s39 offen offset:1024 lds")
    e("s_waitcnt vmcnt(0)"); e("s_barrier")
    for i, x in enumerate(kfr(0)):
        p.put(areads(x, i % RING)[0]); p.waitall(vm=False)
        for t in amf(x, i % RING, czero=True): e(t)
    e("s_nop 7")
    for rh in range(4): rowmax(42, [SS[0] + 16 * T + 4 * rh + i for T in range(2) for i in range(4)]); e(f"v_max_f32 v{38+rh}, v{38+rh}, v42")
    e("s_add_u32 s39, s39, 8192"); e("s_cmp_lt_u32 s39, 131072"); e("s_cbranch_scc1 L_maxloop")
    xmax_negm()
    e("s_barrier")
    for w, b in [("K", 0), ("K", 1), ("V", 0), ("K", 2), ("V", 1), ("K", 3)]:
        for x in kv_dma(w, b): p.put(x)
    attention(False)
    p.waitall(); e("s_branch L_attn_done")
    print("sched", st)
    return p

def build(path, prof=None, opt=None):
    KN = NAME + "_kernel"
    p = gen(prof, opt)
    out, nn = check(p.L); print(path, "nops", nn, "lines", len(out))
    s = ("; @launch grid=(256,1,1) block=(256,1,1) lds=163840\n" + '.amdgcn_target "amdgcn-amd-amdhsa--gfx950"\n'
         + f".set CODE_BYTES, L_code_end - {KN}\n" + khead(KN) + "\n".join(out) + "\n" + kd(KN))
    open(path, "w").write(s)
PA = ["start", "pf", "xarr", "lnc", "lnst", "f1", "g1", "silu", "qep", "attn", "p2", "sst", "f5", "end"]
PB = ["attn", "q4", "q5", "q6", "q8", "q10", "p2", "sst", "f5", "end"]
PC = ["f1", "k0", "k1", "k3", "k6", "k9", "k12", "k15", "g1", "qep", "a0", "a3", "a6", "a9"]
PD = ["qep", "a0", "a2", "a4", "a6", "a8", "a10", "a11", "a12", "a13", "a14", "a15", "attn", "j2"]
RA = ["start", "f1", "g1", "qep", "attn", "q4", "t0", "p2", "sst", "f5", "end"]
PF = ["attn", "m0", "m72", "m144", "m216", "q4", "q5", "q6", "q8", "t0", "t50", "p2", "sst", "end"]
PC = ["f1", "k0", "k1", "k2", "k3", "k4", "k6", "k8", "k12", "k16", "g1", "silu", "qep", "a0"]
if __name__ == "__main__":
    build("m5a.s")
    build("m5b.s", None, dict(outfl="sc1"))
    build("m5c.s", None, dict(pubfirst=True))
    build("m5d.s", None, dict(pubfirst=True, p_sp=12, pub4=64))
```
